```python
import torch

def _softmax(x, axis=-1):
    return torch.softmax(x, dim=axis)
def _gelu(x):
    return torch.nn.functional.gelu(x, approximate="tanh")
def _silu(x):
    return torch.nn.functional.silu(x)
def _sigmoid(x):
    return torch.sigmoid(x)
def _layernorm(x, axis=-1, eps=1e-5):
    m = x.mean(dim=axis, keepdim=True)
    v = x.var(dim=axis, keepdim=True, unbiased=False)
    return (x - m) / torch.sqrt(v + eps)
def _scatter_add(tgt, idx, src, axis=0):
    return tgt.clone().index_add_(axis, idx, src)
def _segment_sum(src, seg, n):
    out = torch.zeros((n,) + src.shape[1:], dtype=src.dtype)
    return out.index_add_(0, seg, src)
def _pad(x, pw):
    flat = tuple(v for pair in reversed(pw) for v in pair)
    return torch.nn.functional.pad(x, flat)

kernel_name = 'recurrent_scan__mha_block_cached__geglu_ffn__prompt'

def setup_inputs():

    _w = (lambda a: (lambda t: t.to(torch.bfloat16) if t.is_floating_point() else t)(torch.as_tensor(a)))
    def _A_setup():
        B, Sq, D = 1, 2048, 1024
        H, Sk, Dh = 32, 2048, 128
        return {
            "x": _w((lambda *s: torch.randn(*s, dtype=torch.bfloat16) * 0.05)(B, Sq, D)),
            "k_cache": _w((lambda *s: torch.randn(*s, dtype=torch.bfloat16) * 0.8)(B, H, Sk, Dh)),
            "v_cache": _w((lambda *s: torch.randn(*s, dtype=torch.bfloat16) * 0.2)(B, H, Sk, Dh)),
            "wq": _w((lambda *s: torch.randn(*s, dtype=torch.bfloat16) * 0.8)(D, H * Dh) * (D ** -0.5)),
            "wo": _w((lambda *s: torch.randn(*s, dtype=torch.bfloat16) * 0.2)(H * Dh, D) * ((H * Dh) ** -0.5)),
        }
    _A_in = _A_setup()

    def _B_setup():
        B, S, D, F = 1, 2048, 1024, 3584
        return {
            "x": _w((lambda *s: torch.randn(*s, dtype=torch.bfloat16) * 0.05)(B, S, D)),
            "w_gate": _w((lambda *s: torch.randn(*s, dtype=torch.bfloat16) * 0.1)(D, F)),
            "w_up": _w((lambda *s: torch.randn(*s, dtype=torch.bfloat16) * 0.1)(D, F)),
            "w_down": _w((lambda *s: torch.randn(*s, dtype=torch.bfloat16) * 0.1)(F, D)),
        }
    _B_in = _B_setup()

    return {
        "A_x": _A_in["x"],
        "A_k_cache": _A_in["k_cache"],
        "A_v_cache": _A_in["v_cache"],
        "A_wq": _A_in["wq"],
        "A_wo": _A_in["wo"],
        "B_x": _B_in["x"],
        "B_w_gate": _B_in["w_gate"],
        "B_w_up": _B_in["w_up"],
        "B_w_down": _B_in["w_down"],
    }

def reference(A_x, A_k_cache, A_v_cache, A_wq, A_wo, B_x, B_w_gate, B_w_up, B_w_down):
    def _A_ref(x, k_cache, v_cache, wq, wo):
        B, Sq, D = x.shape
        H, Dh = 32, 128
        q = (lambda x, *d: x.permute(*d))((x @ wq).reshape(B, Sq, H, Dh), 0, 2, 1, 3)
        scores = torch.einsum("bhqd,bhkd->bhqk", q, k_cache) * (Dh ** -0.5)
        p = _softmax(scores, axis=-1)
        o = torch.einsum("bhqk,bhkd->bhqd", p, v_cache)
        return (lambda x, *d: x.permute(*d))(o, 0, 2, 1, 3).reshape(B, Sq, H * Dh) @ wo

    def _B_ref(x, w_gate, w_up, w_down):
        return (_gelu(x @ w_gate) * (x @ w_up)) @ w_down

    x = A_x
    xn = _layernorm(x, axis=-1)
    s = _A_ref(xn, A_k_cache, A_v_cache, A_wq, A_wo)
    g = _silu(_B_ref(xn, B_w_gate, B_w_up, B_w_down))
    return x + s * g
```

```python
import re

REG_RE = re.compile(r"\b([vas])(\d+)\b|\b([vas])\[(\d+):(\d+)\]")

def regs_of(op):
    out = []
    for m in REG_RE.finditer(op):
        if m.group(1):
            out.append((m.group(1), int(m.group(2))))
        else:
            out += [(m.group(3), i) for i in range(int(m.group(4)), int(m.group(5)) + 1)]
    if re.search(r"\bvcc\b", op): out.append(("s", 106))
    if re.search(r"\bm0\b", op): out.append(("s", 124))
    if re.search(r"\bexec\b", op): out.append(("s", 126))
    return out

TRANS = ("v_exp_f32", "v_log_f32", "v_rcp_f32", "v_rsq_f32", "v_sqrt_f32", "v_sin_f32", "v_cos_f32")

class Ins:
    __slots__ = ("text", "mn", "kind", "rd", "wr", "srcc", "passes", "nop")
    def __init__(self, text):
        self.text = text
        t = text.split(";")[0].strip()
        self.rd = []; self.wr = []; self.srcc = []; self.passes = 0; self.nop = 1
        if not t or t.endswith(":") or t.startswith("."):
            self.mn = ""; self.kind = "label" if t.endswith(":") else "none"; self.nop = 0
            return
        parts = t.split(None, 1)
        mn = self.mn = parts[0]
        rest = parts[1] if len(parts) > 1 else ""
        ops = [o.strip() for o in re.split(r",(?![^\[]*\])", rest)] if rest else []
        R = [regs_of(o) for o in ops]
        flat = lambda l: [x for y in l for x in y]
        if mn.startswith("v_mfma"):
            self.kind = "mfma"; self.wr = R[0]; self.rd = R[1] + R[2]; self.srcc = R[3]
            self.passes = 8 if "32x32x16" in mn else 4
        elif mn.startswith("ds_read") or mn.startswith("ds_bpermute") or mn.startswith("ds_swizzle") or mn.startswith("ds_permute"):
            self.kind = "dsr"; self.wr = R[0]; self.rd = flat(R[1:])
        elif mn.startswith("ds_"):
            self.kind = "dsw"; self.rd = flat(R)
        elif mn.startswith("buffer_load") or mn.startswith("global_load"):
            if re.search(r"\blds\b", rest) or "_lds_" in mn:
                self.kind = "dma"; self.rd = flat(R) + [("s", 124)]
            else:
                self.kind = "vld"; self.wr = R[0]; self.rd = flat(R[1:])
        elif mn.startswith("buffer_store") or mn.startswith("global_store"):
            self.kind = "vst"; self.rd = flat(R)
        elif mn.startswith("buffer_atomic") or mn.startswith("global_atomic"):
            self.kind = "vld" if re.search(r"\bsc0\b", rest) else "vst"
            self.rd = flat(R)
            if self.kind == "vld": self.wr = R[0]
        elif mn.startswith("buffer_") :
            self.kind = "vst"
        elif mn.startswith("v_"):
            self.kind = "trans" if mn.split("_e")[0] in TRANS else "valu"
            if "permlane" in mn and "swap" in mn:
                self.wr = R[0] + R[1]; self.rd = R[0] + R[1]
            elif mn.startswith("v_cmp"):
                self.wr = R[0]; self.rd = flat(R[1:])
            elif "_co_" in mn:
                self.wr = R[0] + R[1]; self.rd = flat(R[2:])
            else:
                self.wr = R[0]; self.rd = flat(R[1:])
                if mn.startswith("v_fmac") or mn.startswith("v_pk_fmac") or mn.startswith("v_dot2c") or mn.startswith("v_writelane"):
                    self.rd += R[0]
        elif mn == "s_nop":
            self.kind = "salu"; self.nop = int(ops[0], 0) + 1
        elif mn == "s_waitcnt":
            self.kind = "wait"
        elif mn.startswith("s_load") or mn.startswith("s_memtime") or mn.startswith("s_memrealtime") or mn.startswith("s_buffer_load"):
            self.kind = "smem"; self.wr = R[0]; self.rd = flat(R[1:])
        elif mn.startswith("s_cbranch") or mn == "s_branch" or mn == "s_endpgm" or mn == "s_barrier" or mn.startswith("s_setprio") or mn.startswith("s_sleep"):
            self.kind = "ctl"
        elif mn.startswith("s_cmp"):
            self.kind = "salu"; self.rd = flat(R)
        else:
            self.kind = "salu"; self.wr = R[0] if R else []; self.rd = flat(R[1:])

class Stream:
    def __init__(self):
        self.ins = []
        self.lg = []
        self.vm = []
        self.auto = True
    def state(self):
        return ([set(x) for x in self.lg], [set(x) for x in self.vm])
    def set_state(self, st):
        self.lg = [set(x) for x in st[0]]; self.vm = [set(x) for x in st[1]]
    def raw(self, text):
        self.ins.append(Ins(text))
    def wait(self, vm=None, lg=None):
        p = []
        if vm is not None:
            assert vm <= 63
            p.append(f"vmcnt({vm})")
            if len(self.vm) > vm: self.vm = self.vm[len(self.vm) - vm:] if vm else []
        if lg is not None:
            assert lg <= 15
            p.append(f"lgkmcnt({lg})")
            if len(self.lg) > lg: self.lg = self.lg[len(self.lg) - lg:] if lg else []
        self.raw("s_waitcnt " + " ".join(p))
    def __call__(self, text):
        for line in text.split("\n"):
            line = line.strip()
            if line: self.emit1(line)
    def emit1(self, text):
        i = Ins(text)
        if i.kind == "wait":
            m = re.search(r"vmcnt\((\d+)\)", text); n = re.search(r"lgkmcnt\((\d+)\)", text)
            self.wait(int(m.group(1)) if m else None, int(n.group(1)) if n else None)
            return
        if self.auto:
            touched = set(i.rd) | set(i.wr) | set(i.srcc)
            need_lg = None; need_vm = None
            for k in range(len(self.lg) - 1, -1, -1):
                if self.lg[k] & touched:
                    need_lg = len(self.lg) - 1 - k; break
            for k in range(len(self.vm) - 1, -1, -1):
                if self.vm[k] & touched:
                    need_vm = len(self.vm) - 1 - k; break
            if need_lg is not None or need_vm is not None:
                if need_lg is not None: need_lg = min(need_lg, 15)
                if need_vm is not None: need_vm = min(need_vm, 63)
                self.wait(need_vm, need_lg)
        self.ins.append(i)
        if i.kind == "dsr": self.lg.append(set(i.wr))
        elif i.kind == "dsw": self.lg.append(set())
        elif i.kind == "vld": self.vm.append(set(i.wr))
        elif i.kind in ("dma", "vst"): self.vm.append(set())
        elif i.kind == "smem":
            pass
    def text(self):
        return "\n".join(x.text for x in self.ins)

def check_hazards(ins, name=""):
    errs = []
    hist = []
    pos = 0
    for i in ins:
        if i.kind in ("label", "none"): continue
        rd = set(i.rd); wr = set(i.wr); sc = set(i.srcc)
        for (p, ppos) in reversed(hist):
            d = pos - ppos - p.nop
            if d > 20: break
            pw = set(p.wr)
            need = 0; why = ""
            if p.kind in ("valu", "trans"):
                if i.kind == "mfma" and pw & (rd | sc): need = 2; why = "valu->mfma"
                if p.kind == "trans" and i.kind == "valu" and pw & rd: need = max(need, 1); why = "trans->valu"
                if p.kind == "trans" and i.kind == "mfma" and pw & (rd | sc): need = 2
                if i.mn.startswith("v_readfirstlane") or i.mn.startswith("v_readlane"):
                    if pw & rd: need = max(need, 1); why = "valu->readlane"
                if "permlane" in i.mn and pw & rd: need = max(need, 2); why = "valu->permlane"
                if "dpp" in i.text and pw & rd: need = max(need, 2); why = "valu->dpp"
                sw = {r for r in pw if r[0] == "s"}
                if sw:
                    if i.kind in ("vld", "vst", "dma") and sw & rd: need = max(need, 5); why = "valu sgpr->vmem"
                    if i.kind in ("valu", "trans") and sw & rd: need = max(need, 2); why = "valu sgpr->valu"
                    if i.kind in ("salu",) and sw & rd: need = max(need, 1); why = "valu sgpr->salu(pad)"
            if p.kind == "mfma":
                big = p.passes == 8
                if i.kind == "mfma":
                    if pw & rd: need = 12 if big else 8; why = "mfma D->A/B"
                    if pw & sc and not (pw == sc and p.passes == i.passes): need = max(need, 10 if big else 6); why = "mfma D->C overlap"
                    if pw & wr and not (pw == sc): need = max(need, 10 if big else 6); why = "mfma D->D waw"
                elif i.kind in ("valu", "trans", "dsr", "dsw", "vld", "vst", "dma"):
                    if pw & (rd | wr): need = 12 if big else 8; why = "mfma D->valu/mem"
                if i.kind in ("valu", "trans") and set(p.srcc) & wr: need = max(need, 7 if big else 3); why = "mfma C war"
            if p.kind == "salu" and ("s", 124) in pw and i.kind == "dma": need = 1; why = "m0->dma"
            if p.kind == "vst" and ("x4" in p.mn or "x3" in p.mn) and set(p.rd) & wr and i.kind in ("valu", "trans", "mfma", "dsr", "vld"):
                need = max(need, 2); why = "store data war"
            if d < need:
                errs.append(f"{name}: {why} need {need} have {d}: [{p.text}] -> [{i.text}]")
        hist.append((i, pos)); pos += i.nop
        if len(hist) > 40: hist.pop(0)
    return errs

def weave(S, mfmas, fill):
    n = len(mfmas)
    slots = [[] for _ in range(n + 1)]
    for p, t in fill:
        p = max(-1, min(n - 1, p))
        slots[p + 1].append(t)
    for t in slots[0]: S(t)
    for k in range(n):
        S(mfmas[k])
        for t in slots[k + 1]: S(t)

def kernel_desc(name, vgprs, accum, sgprs=102):
    return f""".p2align 6
.amdhsa_kernel {name}
  .amdhsa_next_free_vgpr {vgprs}
  .amdhsa_next_free_sgpr {sgprs}
  .amdhsa_accum_offset {accum}
  .amdhsa_group_segment_fixed_size 0
  .amdhsa_kernarg_size 96
  .amdhsa_user_sgpr_count 2
  .amdhsa_user_sgpr_kernarg_segment_ptr 1
  .amdhsa_system_sgpr_workgroup_id_x 1
.end_amdhsa_kernel"""

def kernel_head(name):
    return f".globl {name}\n.p2align 8\n.type {name},@function\n{name}:"
```

```python
from asmlib import *
from layout import *

def gen_k1(name="ln_kernel"):
    S = Stream()
    S.raw(kernel_head(name))
    S("s_cmp_ge_u32 s2, 256")
    S(f"s_cbranch_scc1 L_{name}_end")
    S(f"s_load_dwordx2 s[4:5], s[0:1], {KA_X}")
    S(f"s_load_dwordx2 s[6:7], s[0:1], {KA_WS}")
    S("v_and_b32 v1, 7, v0")
    S("v_bfe_u32 v2, v0, 3, 3")
    S("v_lshrrev_b32 v3, 6, v0")
    S("v_lshlrev_b32 v4, 11, v1")
    S("v_lshl_add_u32 v4, v2, 4, v4")
    S("v_lshl_add_u32 v4, v3, 9, v4")
    S("s_lshl_b32 s3, s2, 14")
    S.raw("s_waitcnt lgkmcnt(0)")
    S("s_mov_b32 s8, s4\ns_mov_b32 s9, s5\ns_mov_b32 s10, 0x400000\ns_mov_b32 s11, 0x20000")
    S("s_mov_b32 s12, s6\ns_mov_b32 s13, s7\ns_mov_b32 s14, 0x400000\ns_mov_b32 s15, 0x20000")
    for i in range(4):
        S(f"buffer_load_dwordx4 v[{8+4*i}:{11+4*i}], v4, s[8:11], s3 offen offset:{128*i} nt")
    S("v_lshrrev_b32 v5, 2, v2")
    S("v_lshl_add_u32 v5, v3, 3, v5")
    S("v_lshlrev_b32 v5, 14, v5")
    S("v_and_b32 v6, 3, v2")
    S("v_lshl_add_u32 v5, v6, 8, v5")
    S("v_lshl_add_u32 v5, v1, 4, v5")
    S("s_lshr_b32 s16, s2, 5\ns_lshl_b32 s16, s16, 19")
    S("s_bfe_u32 s17, s2, 0x40001\ns_lshl_b32 s17, s17, 10\ns_add_u32 s16, s16, s17")
    S("s_and_b32 s17, s2, 1\ns_lshl_b32 s17, s17, 7\ns_add_u32 s16, s16, s17")
    S("s_add_u32 s17, s16, 32768\ns_add_u32 s18, s16, 65536\ns_add_u32 s19, s16, 98304")
    S("v_bfe_u32 v6, v0, 4, 2")
    S("v_lshl_add_u32 v6, v3, 2, v6")
    S("v_lshlrev_b32 v6, 2, v6")
    S("v_lshlrev_b32 v7, 6, v1")
    S("v_add_u32 v6, v6, v7")
    S("s_mov_b32 s20, 0xffff0000")
    for i in range(16):
        S(f"v_lshlrev_b32 v{32+2*i}, 16, v{8+i}")
        S(f"v_and_b32 v{33+2*i}, s20, v{8+i}")
    def reduce(src_regs, off):
        cur = list(src_regs)
        t = 64
        nxt = []
        for i in range(0, 32, 2):
            S(f"v_add_f32 v{t+i//2}, v{cur[i]}, v{cur[i+1]}"); nxt.append(t + i // 2)
        cur = nxt
        while len(cur) > 1:
            nxt = []
            for i in range(0, len(cur), 2):
                S(f"v_add_f32 v{cur[i]}, v{cur[i]}, v{cur[i+1]}"); nxt.append(cur[i])
            cur = nxt
        S("s_nop 1")
        S(f"v_add_f32_dpp v65, v64, v64 row_ror:8 row_mask:0xf bank_mask:0xf")
        S(f"ds_write_b32 v6, v65 offset:{off}")
        S.wait(lg=0)
        S("s_barrier")
        for i in range(4):
            S(f"ds_read_b128 v[{64+4*i}:{67+4*i}], v7 offset:{off+16*i}")
        cur = list(range(64, 80))
        while len(cur) > 1:
            nxt = []
            for i in range(0, len(cur), 2):
                S(f"v_add_f32 v{cur[i]}, v{cur[i]}, v{cur[i+1]}"); nxt.append(cur[i])
            cur = nxt
        S("v_mul_f32 v80, 0x3a800000, v64")
    reduce(range(32, 64), 0)
    S("v_mov_b32 v81, v80")
    for i in range(32):
        S(f"v_sub_f32 v{96+i}, v{32+i}, v81")
    for i in range(32):
        S(f"v_mul_f32 v{96+i}, v{96+i}, v{96+i}")
    reduce(range(96, 128), 512)
    S("v_cvt_pk_bf16_f32 v82, v81, v80")
    S("v_lshlrev_b32 v83, 16, v82")
    S("v_and_b32 v84, s20, v82")
    S("v_add_f32 v84, 0x3727c5ac, v84")
    S("v_cvt_pk_bf16_f32 v84, v84, v84")
    S("v_and_b32 v84, s20, v84")
    S("v_sqrt_f32 v84, v84")
    S("s_nop 0")
    S("v_cvt_pk_bf16_f32 v84, v84, v84")
    S("v_and_b32 v84, s20, v84")
    S("v_rcp_f32 v85, v84")
    for i in range(32):
        S(f"v_sub_f32 v{32+i}, v{32+i}, v83")
    for i in range(16):
        S(f"v_cvt_pk_bf16_f32 v{8+i}, v{32+2*i}, v{33+2*i}")
    for i in range(16):
        S(f"v_lshlrev_b32 v{32+2*i}, 16, v{8+i}")
        S(f"v_and_b32 v{33+2*i}, s20, v{8+i}")
    for i in range(32):
        S(f"v_mul_f32 v{32+i}, v{32+i}, v85")
    for i in range(16):
        S(f"v_cvt_pk_bf16_f32 v{8+i}, v{32+2*i}, v{33+2*i}")
        if i % 4 == 3:
            S(f"buffer_store_dwordx4 v[{8+i-3}:{8+i}], v5, s[12:15], s{16+i//4} offen")
    S.raw(f"L_{name}_end:")
    S("s_endpgm")
    errs = check_hazards(S.ins, name)
    assert not errs, "\n".join(errs)
    return S.text(), kernel_desc(name, 128, 128, 32), f"; @launch kernel={name} grid=(256,1,1) block=(256,1,1) lds=1024"
```

```python
from asmlib import *
from layout import *
import math

LA = 6
RA = 8
NG = 22
SLOT = 24576
KRING = 96 * 1024
VRING = 0

GU0 = 16
QACC = 0
BR = 128
AR = 192
V_TOK = 1; V_Q = 2; V_X = 3; V_Y = 4; V_H = 5
V_AD = 240
A_S = 16
A_P = 80
A_E = 112
A_NM = 128
A_ONE = 144
A_K = 148
A_V = 180
A_KAD = 212
A_VAD = 216
A_TMP = 224
V_KV = 6
V_O = 12
A_O = 0
A_Q = 128
A_L = 192

def acc(nb, mb):
    if nb < 8:
        r = QACC + 16 * nb + 4 * mb; return f"a[{r}:{r+3}]"
    k = nb - 8; b = k // 2; u = k % 2
    r = GU0 + 32 * b + 16 * u + 4 * mb; return f"v[{r}:{r+3}]"

def a_reads(stage, nb):
    slot = stage % 4
    st = 1 if slot >= 2 else 0
    base = (slot % 2) * SLOT
    ring = (NG * stage + nb) % RA
    d = AR + 4 * ring
    if nb < 8:
        half = nb >> 2; p64 = (nb >> 1) & 1; T = nb & 1
        ad = V_AD + 8 + 2 * st + p64
        off = base + half * 4096 + 8 * T
    else:
        k = nb - 8; b = k // 2; u = k % 2
        mh = 2 + 2 * u + (b >> 2)
        ad = V_AD + 4 * st + (b & 3)
        off = base + mh * 4096
    return [f"ds_read_b64_tr_b16 a[{d}:{d+1}], v{ad} offset:{off}",
            f"ds_read_b64_tr_b16 a[{d+2}:{d+3}], v{ad} offset:{off+512}"]

def gemm_load_op(L, q):
    slot = L % 4
    if q < 6:
        mat = q // 2; half = q % 2
        dst = slot * SLOT + q * 4096
        if mat == 0:
            t = f"s_add_u32 m0, s46, {dst - 128*half if dst - 128*half >= 0 else 0}\n"
            assert dst - 128 * half >= 0
            t += "s_nop 0\n"
            t += f"buffer_load_dwordx4 v{V_Q}, s[12:15], s44 offen offset:{128*half} lds"
            if half == 1: t += "\ns_add_u32 s44, s44, 0x40000"
        else:
            srd = "s[16:19]" if mat == 1 else "s[20:23]"
            t = f"s_add_u32 m0, s46, {dst}\ns_nop 0\n"
            t += f"buffer_load_dwordx4 v{V_X if half == 0 else V_Y}, {srd}, s45 offen lds"
            if q == 5: t += f"\ns_add_u32 s45, s45, {32*7168}"
        return t
    mb = q - 6
    d = BR + 16 * slot + 4 * mb
    t = f"buffer_load_dwordx4 a[{d}:{d+3}], v{V_TOK}, s[8:11], s43 offen offset:{1024*mb}"
    if mb == 3: t += "\ns_add_u32 s43, s43, 0x4000"
    return t

def kv_dma(which, slot, i, soff="s56"):
    t = ""
    if which == "K":
        if i == 0: t += f"s_add_u32 m0, s57, {KRING + slot*16384}\ns_nop 0\n"
        t += f"buffer_load_dwordx4 v{V_KV+i}, s[24:27], {soff} offen offset:{1024*i} lds"
    else:
        if i == 0: t += f"s_add_u32 m0, s57, {VRING + slot*16384}\ns_nop 0\n"
        t += f"buffer_load_dwordx4 v{V_KV+4+(i&1)}, s[28:31], {soff} offen offset:{1024*i} lds"
    return t

def gemm_stages(S, stages, last=31, tail_ops=None, first=False):
    tail_ops = list(tail_ops or [])
    for s in stages:
        for nb in range(NG):
            ring = (NG * s + nb) % RA
            a = AR + 4 * ring
            mf = []
            for mb in range(4):
                b = BR + 16 * (s % 4) + 4 * mb
                c = acc(nb, mb)
                mf.append(f"v_mfma_f32_16x16x32_bf16 {c}, a[{a}:{a+3}], a[{b}:{b+3}], {c}")
            fill = []
            ab = NG * s + nb + LA
            s2, nb2 = divmod(ab, NG)
            if s2 <= last:
                r = a_reads(s2, nb2)
                fill.append((0, r[0])); fill.append((1, r[1]))
            for sp in (s, s - 1):
                q = NG * s + nb - (NG * sp + NG - LA)
                if 0 <= q < 10:
                    if sp + 3 <= last:
                        fill.append((2, gemm_load_op(sp + 3, q)))
                    elif tail_ops:
                        fill.append((2, tail_ops.pop(0)))
            weave(S, mf, fill)
            if nb == NG - LA - 1 and s + 1 <= last:
                S.bar_hook(s)
    assert not tail_ops

def att_half(S, t, do_qk=True, do_pv=True, do_sm=True, k_reload=True, v_reload=True, dma=None, pre=None, cfirst=None):
    p = t & 1
    T = t >> 1
    sN = A_S + 32 * (p ^ 1); sC = A_S + 32 * p
    pW = A_P + 16 * p; pR = A_P + 16 * (p ^ 1)
    mf = []; lds = []
    kslot = ((t + 2) >> 1) % 4; khalf = (t + 2) & 1
    vslot = T % 4; vhalf = p
    def kread(kb, kk):
        d = A_K + 16 * kb + 4 * kk
        return f"ds_read_b128 v[{d}:{d+3}], v{A_KAD+kk} offset:{kslot*16384 + khalf*8192 + kb*4096}"
    def vread(db, n):
        d = A_V + 4 * db + 2 * n
        return f"ds_read_b64_tr_b16 v[{d}:{d+1}], v{A_VAD+db} offset:{vslot*16384 + vhalf*8192 + n*4096}"
    for kb in range(2):
        for kk in range(4):
            if do_qk:
                for qb in range(4):
                    d = sN + 16 * kb + 4 * qb
                    if kk == 0:
                        c = cfirst if cfirst is not None else f"v[{A_NM+4*qb}:{A_NM+4*qb+3}]"
                    else:
                        c = f"v[{d}:{d+3}]"
                    ka = A_K + 16 * kb + 4 * kk; qa = A_Q + 16 * qb + 4 * kk
                    mf.append(f"v_mfma_f32_16x16x32_bf16 v[{d}:{d+3}], v[{ka}:{ka+3}], a[{qa}:{qa+3}], {c}")
            if k_reload: lds.append((len(mf) - 1, kread(kb, kk)))
    for db in range(8):
        if do_pv:
            for qb in range(4):
                o = A_O + 32 * qb + 4 * db; va = A_V + 4 * db; pa = pR + 4 * qb
                mf.append(f"v_mfma_f32_16x16x32_bf16 a[{o}:{o+3}], v[{va}:{va+3}], v[{pa}:{pa+3}], a[{o}:{o+3}]")
            if db % 2 == 1:
                qb = db // 2
                l = A_L + 4 * qb; pa = pR + 4 * qb
                mf.append(f"v_mfma_f32_16x16x32_bf16 a[{l}:{l+3}], v[{A_ONE}:{A_ONE+3}], v[{pa}:{pa+3}], a[{l}:{l+3}]")
        if v_reload:
            e = len(mf) - 1 - (1 if (do_pv and db % 2 == 1) else 0)
            lds.append((e, vread(db, 0))); lds.append((e, vread(db, 1)))
    valu = []
    if do_sm:
        seq = []
        for qb in range(4):
            for kb in range(2):
                for r in range(4):
                    seq.append((qb, kb, r))
        pend = []
        for i, (qb, kb, r) in enumerate(seq):
            valu.append((8, f"v_exp_f32 v{A_E + i % 16}, v{sC + 16*kb + 4*qb + r}"))
            if pend and i >= pend[0][0] + 2:
                valu.append((4, pend.pop(0)[1]))
            if r % 2 == 1:
                pend.append((i, f"v_cvt_pk_bf16_f32 v{pW + 4*qb + 2*kb + r//2}, v{A_E + (i-1) % 16}, v{A_E + i % 16}"))
        for _, x in pend: valu.append((4, x))
    dm = list(dma or [])
    n = len(mf)
    if pre: S(pre)
    if n == 0:
        for _, x in lds: S(x)
        last_trans = False
        for c, x in valu:
            if last_trans and c == 4: S("s_nop 0")
            S(x); last_trans = (c == 8)
        for x in dm: S(x)
        return
    tot_v = sum(c for c, _ in valu)
    done_v = 0
    vi = 0; li = 0; di = 0
    dpos = [int((k + 0.5) * n / max(1, len(dm))) for k in range(len(dm))]
    for g in range(n):
        S(mf[g])
        cap = 8
        lastgap = (g == n - 1)
        prev_trans = False
        while True:
            want_v = vi < len(valu) and (done_v < tot_v * (g + 1) / n or lastgap)
            can_l = li < len(lds) and lds[li][0] <= g
            can_d = di < len(dm) and dpos[di] <= g
            if can_d and (cap >= 8 or lastgap):
                S(dm[di]); di += 1; cap -= 8; prev_trans = False
            elif want_v and (valu[vi][0] <= cap or lastgap) and not (can_l and lds[li][0] + 3 <= g and cap >= 4):
                if prev_trans and valu[vi][0] == 4: S("s_nop 0")
                prev_trans = valu[vi][0] == 8
                S(valu[vi][1]); done_v += valu[vi][0]; cap -= valu[vi][0]; vi += 1
            elif can_l and (cap >= 4 or lastgap):
                S(lds[li][1]); li += 1; cap -= 4; prev_trans = False
            else:
                break
    assert vi == len(valu) and li == len(lds) and di == len(dm)

def att_stage(S, T, kind="mid"):
    kd = [kv_dma("K", (T + 3) % 4, i) for i in range(4)]
    vd = [kv_dma("V", (T + 2) % 4, i) for i in range(4)]
    vd[3] += "\ns_add_u32 s56, s56, 0x4000"
    if kind == "first":
        att_half(S, 2 * T, do_pv=False, dma=kd)
        att_half(S, 2 * T + 1, dma=vd)
    elif kind == "last":
        S.wait(vm=0); S("s_barrier")
        att_half(S, 2 * T, k_reload=False)
        att_half(S, 2 * T + 1, do_qk=False, k_reload=False)
        att_half(S, 2 * T + 2, do_qk=False, do_sm=False, k_reload=False, v_reload=False)
    else:
        S.wait(vm=8); S("s_barrier")
        att_half(S, 2 * T, dma=kd)
        att_half(S, 2 * T + 1, dma=vd)

def crosslane_max(S, regs, tmp):
    for r in regs:
        S(f"v_mov_b32 v{tmp}, v{r}")
        S("s_nop 1")
        S(f"v_permlane16_swap_b32 v{tmp}, v{r}")
        S("s_nop 1")
        S(f"v_max_f32 v{r}, v{r}, v{tmp}")
        S(f"v_mov_b32 v{tmp}, v{r}")
        S("s_nop 1")
        S(f"v_permlane32_swap_b32 v{tmp}, v{r}")
        S("s_nop 1")
        S(f"v_max_f32 v{r}, v{r}, v{tmp}")

def gen_k2(name="main_kernel"):
    S = Stream()
    S.raw(kernel_head(name))
    S("s_cmp_ge_u32 s2, 256")
    S(f"s_cbranch_scc1 L_{name}_end")
    S(f"s_load_dwordx2 s[60:61], s[0:1], {KA_WS}")
    S(f"s_load_dwordx2 s[62:63], s[0:1], {KA_WQ}")
    S(f"s_load_dwordx4 s[64:67], s[0:1], {KA_WG}")
    S(f"s_load_dwordx4 s[68:71], s[0:1], {KA_K}")
    S("v_lshrrev_b32 v13, 6, v0")
    S("v_and_b32 v0, 63, v0")
    S("v_readfirstlane_b32 s40, v13")
    S("s_and_b32 s41, s2, 7\ns_lshl_b32 s41, s41, 2\ns_bfe_u32 s42, s2, 0x20003\ns_add_u32 s41, s41, s42")
    S("s_lshr_b32 s42, s2, 5")
    S("s_lshl_b32 s46, s40, 10")
    S("s_lshl_b32 s57, s40, 12")
    S("v_lshrrev_b32 v14, 3, v0")
    S("v_and_b32 v15, 7, v0")
    S("v_bfe_u32 v240, v14, 1, 1")
    S("v_and_b32 v241, 1, v13")
    S("v_lshl_add_u32 v240, v241, 1, v240")
    S("v_lshlrev_b32 v240, 1, v240")
    S("v_xor_b32 v240, v240, v15")
    S("v_lshl_add_u32 v241, v13, 3, v14")
    S(f"v_lshlrev_b32 v{V_Q}, 13, v241")
    S(f"v_lshl_add_u32 v{V_Q}, v240, 4, v{V_Q}")
    S("s_and_b32 s47, s41, 3\ns_lshl_b32 s58, s47, 1")
    S("v_mul_u32_u24 v242, 7168, v241")
    S("v_add_u32 v243, s58, v240")
    S(f"v_lshl_add_u32 v{V_X}, v243, 4, v242")
    S("v_add_u32 v243, 8, v243")
    S("v_subrev_u32 v244, 14, v243")
    S("v_cmp_le_u32 vcc, 14, v243")
    S("s_nop 1")
    S("v_cndmask_b32 v243, v243, v244, vcc")
    S(f"v_lshl_add_u32 v{V_Y}, v243, 4, v242")
    S("v_bfrev_b32 v244, 1")
    S("v_cmp_le_u32 vcc, 6, v240")
    S("s_nop 1")
    S(f"v_cndmask_b32 v{V_Y}, v{V_Y}, v244, vcc")
    S(f"v_lshlrev_b32 v{V_TOK}, 4, v0")
    S(f"v_lshl_add_u32 v{V_TOK}, v13, 12, v{V_TOK}")
    S.raw("s_waitcnt lgkmcnt(0)")
    S(f"s_lshl_b32 s59, s42, 19\ns_add_u32 s59, s59, {WS_XN}")
    S(f"s_add_u32 s8, s60, s59\ns_addc_u32 s9, s61, 0\ns_mov_b32 s10, 0x80000\ns_mov_b32 s11, 0x20000")
    S("s_lshl_b32 s59, s41, 8")
    S("s_add_u32 s12, s62, s59\ns_addc_u32 s13, s63, 0\ns_sub_u32 s14, 0x800000, s59\ns_mov_b32 s15, 0x20000")
    S("s_mul_i32 s59, s41, 224")
    S(f"s_add_u32 s16, s64, s59\ns_addc_u32 s17, s65, 0\ns_sub_u32 s18, {1024*7168}, s59\ns_mov_b32 s19, 0x20000")
    S(f"s_add_u32 s20, s66, s59\ns_addc_u32 s21, s67, 0\ns_mov_b32 s22, s18\ns_mov_b32 s23, 0x20000")
    S("s_mov_b32 s43, 0\ns_mov_b32 s44, 0\ns_mov_b32 s45, 0")
    for L in range(2):
        for q in range(10): S(gemm_load_op(L, q))
    for q in range(LA): S(gemm_load_op(2, q))
    S("s_lshl_b32 s59, s41, 19")
    S("s_add_u32 s24, s68, s59\ns_addc_u32 s25, s69, 0\ns_mov_b32 s26, 0x80000\ns_mov_b32 s27, 0x20000")
    S("s_add_u32 s28, s70, s59\ns_addc_u32 s29, s71, 0\ns_mov_b32 s30, 0x80000\ns_mov_b32 s31, 0x20000")
    S("s_lshr_b32 s59, s40, 1\ns_lshl_b32 s55, s42, 1\ns_add_u32 s59, s59, s55")
    S(f"s_mul_i32 s55, s59, {112*8192}\ns_add_u32 s55, s55, {WS_H}")
    S(f"s_add_u32 s32, s60, s55\ns_addc_u32 s33, s61, 0\ns_mov_b32 s34, {112*8192}\ns_mov_b32 s35, 0x20000")
    S(f"s_lshl_b32 s55, s59, 20\ns_add_u32 s55, s55, {WS_O}\ns_lshl_b32 s59, s41, 15\ns_add_u32 s55, s55, s59")
    S(f"s_add_u32 s36, s60, s55\ns_addc_u32 s37, s61, 0\ns_mov_b32 s38, 0x8000\ns_mov_b32 s39, 0x20000")
    S("s_mul_i32 s59, s41, 7")
    for b in range(7):
        S(f"s_add_u32 s55, s47, {b}\ns_sub_u32 s72, s55, 7\ns_cmp_ge_u32 s55, 7\ns_cselect_b32 s55, s72, s55\ns_add_u32 s55, s55, s59")
        S(f"s_lshr_b32 s72, s55, 1\ns_lshl_b32 s72, s72, 13\ns_and_b32 s55, s55, 1\ns_lshl_b32 s55, s55, 3\ns_add_u32 s{48+b}, s72, s55")
    S("v_and_b32 v241, 1, v13")
    S(f"v_lshlrev_b32 v{V_H}, 4, v0")
    S(f"v_lshl_add_u32 v{V_H}, v241, 12, v{V_H}")
    S("v_lshrrev_b32 v242, 4, v0\nv_and_b32 v243, 15, v0")
    S("v_lshl_add_u32 v244, v13, 4, v242")
    S("v_lshlrev_b32 v244, 8, v244")
    S("v_xor_b32 v245, v243, v242")
    S("v_lshl_add_u32 v245, v245, 4, v244")
    for i in range(4):
        S(f"v_xor_b32 v{V_KV+i}, {64*i}, v245")
    S("v_lshlrev_b32 v245, 1, v242")
    S("v_xor_b32 v245, v243, v245")
    S(f"v_lshl_add_u32 v{V_KV+4}, v245, 4, v244")
    S(f"v_xor_b32 v{V_KV+5}, 128, v{V_KV+4}")
    S("v_bfe_u32 v243, v0, 2, 2\nv_and_b32 v244, 3, v0")
    S("v_lshrrev_b32 v245, 1, v243\nv_and_b32 v246, 1, v242\nv_lshl_add_u32 v245, v246, 1, v245")
    S("v_lshlrev_b32 v246, 10, v242\nv_lshl_add_u32 v246, v243, 7, v246")
    S("v_lshrrev_b32 v247, 1, v244\nv_xor_b32 v247, v247, v245\nv_lshl_add_u32 v247, v247, 5, v246")
    S("v_and_b32 v248, 1, v244\nv_lshl_add_u32 v252, v248, 4, v247")
    S("v_lshl_add_u32 v246, v244, 3, v246\nv_lshl_add_u32 v253, v245, 5, v246")
    for nbl in range(4):
        S(f"v_xor_b32 v{V_AD+nbl}, {32*nbl}, v253")
        S(f"v_add_u32 v{V_AD+4+nbl}, {2*SLOT}, v{V_AD+nbl}")
    S(f"v_mov_b32 v{V_AD+8}, v252\nv_xor_b32 v{V_AD+9}, 64, v252")
    S(f"v_add_u32 v{V_AD+10}, {2*SLOT}, v{V_AD+8}\nv_add_u32 v{V_AD+11}, {2*SLOT}, v{V_AD+9}")
    for i in range(128): S(f"v_accvgpr_write_b32 a{QACC+i}, 0")
    for i in range(224): S(f"v_mov_b32 v{GU0+i}, 0")
    S.wait(vm=10 + LA)
    S("s_barrier")
    for nb in range(LA):
        for x in a_reads(0, nb): S(x)
    def bar(s):
        S.wait(vm=10); S("s_barrier")
    S.bar_hook = bar
    S("s_mov_b32 s47, 7")
    n0 = len(S.ins)
    S.raw(".p2align 6")
    S.raw(f"L_{name}_g:")
    gemm_stages(S, [0, 1, 2, 3])
    body1 = [x.text for x in S.ins[n0:]]
    st = S.state()
    S2 = Stream(); S2.set_state(st); S2.bar_hook = lambda s: (S2.wait(vm=10), S2("s_barrier"))
    S2.raw(".p2align 6"); S2.raw(f"L_{name}_g:")
    gemm_stages(S2, [4, 5, 6, 7])
    assert body1 == [x.text for x in S2.ins], "gemm loop body not steady"
    errs = check_hazards(S.ins[n0:] + S2.ins, "gloop"); assert not errs, "\n".join(errs[:10])
    S("s_sub_u32 s47, s47, 1\ns_cmp_lg_u32 s47, 0")
    S(f"s_cbranch_scc1 L_{name}_g")
    tail = []
    for T in range(3):
        for i in range(4):
            tail.append(kv_dma("K", T, i, soff=f"s{73+T}"))
    S("s_mov_b32 s73, 0\ns_mov_b32 s74, 0x4000\ns_mov_b32 s75, 0x8000")
    def bar_tail(s):
        S.wait(vm={28: 10, 29: 10, 30: 10}[s]); S("s_barrier")
    S.bar_hook = bar_tail
    gemm_stages(S, [28, 29, 30, 31], tail_ops=tail)
    S("s_barrier")
    S.raw(f"L_{name}_vpre:")
    for T in range(2):
        for i in range(4): S(kv_dma("V", T, i, soff=f"s{73+T}"))
    nst = 0
    S("s_mov_b32 s76, 0xc0135761")
    S("s_mov_b32 s77, 0xbdd2d3e8")
    S("v_mov_b32 v15, s76")
    T0 = 240
    for b in range(7):
        G = GU0 + 32 * b; U = G + 16
        for i in range(16): S(f"v_mul_f32 v{T0+i}, v{G+i}, v{G+i}")
        for i in range(16): S(f"v_fma_f32 v{T0+i}, v{T0+i}, s77, v15")
        for i in range(16): S(f"v_mul_f32 v{T0+i}, v{G+i}, v{T0+i}")
        for i in range(16): S(f"v_exp_f32 v{T0+i}, v{T0+i}")
        for i in range(16): S(f"v_mul_f32 v{U+i}, v{G+i}, v{U+i}")
        for i in range(16): S(f"v_add_f32 v{T0+i}, 1.0, v{T0+i}")
        for i in range(16): S(f"v_rcp_f32 v{T0+i}, v{T0+i}")
        for i in range(16): S(f"v_mul_f32 v{U+i}, v{U+i}, v{T0+i}")
        for i in range(8): S(f"v_cvt_pk_bf16_f32 v{G+i}, v{U+2*i}, v{U+2*i+1}")
        for mb in range(4):
            S(f"buffer_store_dwordx2 v[{G+2*mb}:{G+2*mb+1}], v{V_H}, s[32:35], s{48+b} offen offset:{1024*mb}")
            nst += 1
    qs = math.log2(math.e) / math.sqrt(128.0)
    import struct
    S(f"s_mov_b32 s76, {struct.unpack('<I', struct.pack('<f', qs))[0]:#x}")
    T0 = 240
    for nb in range(8):
        for i in range(16): S(f"v_accvgpr_read_b32 v{T0+i}, a{QACC+16*nb+i}")
        for i in range(16): S(f"v_mul_f32 v{T0+i}, s76, v{T0+i}")
        for i in range(8): S(f"v_cvt_pk_bf16_f32 v{T0+2*i}, v{T0+2*i}, v{T0+2*i+1}")
        for mb in range(4):
            for h in range(2):
                S(f"v_accvgpr_write_b32 a{A_Q + 16*mb + 4*(nb>>1) + 2*(nb&1) + h}, v{T0+4*mb+2*h}")
    S("s_mov_b32 s78, 0")
    S("v_and_b32 v240, 15, v0\nv_lshrrev_b32 v241, 4, v0")
    S("v_xor_b32 v242, v240, v241\nv_lshlrev_b32 v242, 4, v242\nv_lshl_add_u32 v242, v240, 8, v242")
    S(f"v_add_u32 v242, {KRING}, v242")
    for kk in range(4): S(f"v_xor_b32 v{A_KAD+kk}, {64*kk}, v242")
    S("v_lshrrev_b32 v242, 2, v0")
    S("v_and_b32 v243, 7, v242\nv_lshlrev_b32 v243, 5, v243\nv_lshl_add_u32 v243, v242, 8, v243")
    S("v_and_b32 v244, 3, v0\nv_lshl_add_u32 v243, v244, 3, v243")
    for db in range(8): S(f"v_xor_b32 v{A_VAD+db}, {32*db}, v243")
    for i in range(4): S(f"v_add_u32 v{V_KV+i}, 0x4000, v{V_KV+i}")
    S.raw(f"L_{name}_att:")
    S("s_mov_b32 s56, 0x8000")
    S("s_mov_b32 s79, 0x3f803f80")
    for i in range(4): S(f"v_mov_b32 v{A_ONE+i}, s79")
    for i in range(128): S(f"v_accvgpr_write_b32 a{A_O+i}, 0")
    for i in range(16): S(f"v_accvgpr_write_b32 a{A_L+i}, 0")
    S.wait(vm=0)
    S("s_barrier")
    for kb in range(2):
        for kk in range(4):
            d = A_K + 16 * kb + 4 * kk
            S(f"ds_read_b128 v[{d}:{d+3}], v{A_KAD+kk} offset:{kb*4096}")
    att_half(S, -1, do_pv=False, do_sm=False, v_reload=False, cfirst="0")
    S("s_nop 7")
    S("s_cmp_lg_u32 s78, 0")
    S(f"s_cbranch_scc1 L_{name}_havemax")
    sC = A_S
    for qb in range(4):
        m = A_NM + 4 * qb
        a = sC + 4 * qb; b = sC + 16 + 4 * qb
        S(f"v_max3_f32 v{m}, v{a}, v{a+1}, v{a+2}")
        S(f"v_max3_f32 v{m}, v{m}, v{a+3}, v{b}")
        S(f"v_max3_f32 v{m}, v{m}, v{b+1}, v{b+2}")
        S(f"v_max_f32 v{m}, v{m}, v{b+3}")
    crosslane_max(S, [A_NM + 4 * qb for qb in range(4)], A_TMP)
    for qb in range(4):
        m = A_NM + 4 * qb
        S(f"v_sub_f32 v{m}, 0, v{m}")
        for i in range(1, 4): S(f"v_mov_b32 v{m+i}, v{m}")
    S.raw(f"L_{name}_havemax:")
    for kb in range(2):
        for qb in range(4):
            for r in range(4):
                x = sC + 16 * kb + 4 * qb + r
                S(f"v_add_f32 v{x}, v{x}, v{A_NM+4*qb}")
    att_stage(S, 0, "first")
    S("s_mov_b32 s47, 7")
    n0 = len(S.ins)
    S.raw(".p2align 6")
    S.raw(f"L_{name}_a:")
    for T in (1, 2, 3, 4): att_stage(S, T)
    body1 = [x.text for x in S.ins[n0:]]
    S2 = Stream(); S2.set_state(S.state())
    S2.raw(".p2align 6"); S2.raw(f"L_{name}_a:")
    for T in (5, 6, 7, 8): att_stage(S2, T)
    b2 = [x.text for x in S2.ins]
    if body1 != b2:
        for x, y in zip(body1, b2):
            if x != y: print("DIFF", x, "|", y); break
    assert body1 == b2, "att loop body not steady"
    errs = check_hazards(S.ins[n0:] + S2.ins, "aloop"); assert not errs, "\n".join(errs[:10])
    S("s_sub_u32 s47, s47, 1\ns_cmp_lg_u32 s47, 0")
    S(f"s_cbranch_scc1 L_{name}_a")
    att_stage(S, 29); att_stage(S, 30); att_stage(S, 31, "last")
    S("s_nop 7")
    T0 = 16
    for qb in range(4): S(f"v_accvgpr_read_b32 v{A_TMP+qb}, a{A_L+4*qb}")
    S("s_cmp_lg_u32 s78, 0")
    S(f"s_cbranch_scc1 L_{name}_fin")
    S(f"v_add_f32 v{A_TMP+5}, v{A_TMP}, v{A_TMP+1}\nv_add_f32 v{A_TMP+6}, v{A_TMP+2}, v{A_TMP+3}\nv_add_f32 v{A_TMP+4}, v{A_TMP+5}, v{A_TMP+6}")
    S("s_mov_b32 s79, 0x4e800000")
    S(f"v_cmp_ngt_f32 vcc, s79, v{A_TMP+4}")
    S("s_nop 3")
    S("s_cmp_lg_u64 vcc, 0")
    S("s_cselect_b32 s79, 1, 0")
    S(f"v_mov_b32 v{A_TMP+5}, s79")
    S(f"v_mov_b32 v{A_TMP+6}, s40\nv_lshlrev_b32 v{A_TMP+6}, 2, v{A_TMP+6}")
    S(f"v_add_u32 v{A_TMP+6}, {64*1024}, v{A_TMP+6}")
    S(f"ds_write_b32 v{A_TMP+6}, v{A_TMP+5}")
    S(f"v_mov_b32 v{A_TMP+6}, {64*1024}")
    S.wait(lg=0)
    S("s_barrier")
    S(f"ds_read_b128 v[{A_TMP+8}:{A_TMP+11}], v{A_TMP+6}")
    S(f"v_or_b32 v{A_TMP+8}, v{A_TMP+8}, v{A_TMP+9}\nv_or_b32 v{A_TMP+10}, v{A_TMP+10}, v{A_TMP+11}\nv_or_b32 v{A_TMP+8}, v{A_TMP+8}, v{A_TMP+10}")
    S("s_nop 0")
    S(f"v_readfirstlane_b32 s79, v{A_TMP+8}")
    S("s_nop 1")
    S("s_cmp_lg_u32 s79, 0")
    S(f"s_cbranch_scc1 L_{name}_fb")
    S.raw(f"L_{name}_fin:")
    for qb in range(4): S(f"v_rcp_f32 v{A_TMP+qb}, v{A_TMP+qb}")
    for qb in range(4):
        B = T0 + 32 * qb
        for i in range(32): S(f"v_accvgpr_read_b32 v{B+i}, a{A_O+32*qb+i}")
        for i in range(32): S(f"v_mul_f32 v{B+i}, v{B+i}, v{A_TMP+qb}")
        D = 148 + 16 * qb
        for i in range(16): S(f"v_cvt_pk_bf16_f32 v{D+i}, v{B+2*i}, v{B+2*i+1}")
        for ks in range(4):
            S(f"s_mov_b32 s79, {8192*ks}")
            S(f"buffer_store_dwordx4 v[{D+4*ks}:{D+4*ks+3}], v{V_H}, s[36:39], s79 offen offset:{1024*qb}")
    S.raw(f"L_{name}_end:")
    S("s_endpgm")
    S.raw(f"L_{name}_fb:")
    S.lg = []; S.vm = []
    S("s_mov_b32 s78, 1")
    for qb in range(4): S(f"v_mov_b32 v{A_NM+4*qb}, 0xff800000")
    for i in range(4): S(f"v_subrev_u32 v{V_KV+i}, 0x4000, v{V_KV+i}")
    S("s_mov_b32 s56, 0")
    S("s_mov_b32 s47, 32")
    S.raw(f"L_{name}_fbl:")
    S("s_barrier")
    for i in range(4): S(kv_dma("K", 0, i))
    S("s_add_u32 s56, s56, 0x4000")
    S.wait(vm=0)
    S("s_barrier")
    for half in range(2):
        for kb in range(2):
            for kk in range(4):
                d = A_K + 16 * kb + 4 * kk
                S(f"ds_read_b128 v[{d}:{d+3}], v{A_KAD+kk} offset:{half*8192 + kb*4096}")
        att_half(S, -1, do_pv=False, do_sm=False, v_reload=False, k_reload=False, cfirst="0")
        S("s_nop 7")
        for qb in range(4):
            m = A_NM + 4 * qb
            a = sC + 4 * qb; b = sC + 16 + 4 * qb
            S(f"v_max3_f32 v{m}, v{m}, v{a}, v{a+1}")
            S(f"v_max3_f32 v{m}, v{m}, v{a+2}, v{a+3}")
            S(f"v_max3_f32 v{m}, v{m}, v{b}, v{b+1}")
            S(f"v_max3_f32 v{m}, v{m}, v{b+2}, v{b+3}")
    S("s_sub_u32 s47, s47, 1\ns_cmp_lg_u32 s47, 0")
    S(f"s_cbranch_scc1 L_{name}_fbl")
    crosslane_max(S, [A_NM + 4 * qb for qb in range(4)], A_TMP)
    for qb in range(4):
        m = A_NM + 4 * qb
        S(f"v_sub_f32 v{m}, 0, v{m}")
        for i in range(1, 4): S(f"v_mov_b32 v{m+i}, v{m}")
    S("s_barrier")
    for T in range(3):
        for i in range(4): S(kv_dma("K", T, i, soff=f"s{73+T}"))
    for T in range(2):
        for i in range(4): S(kv_dma("V", T, i, soff=f"s{73+T}"))
    for i in range(4): S(f"v_add_u32 v{V_KV+i}, 0x4000, v{V_KV+i}")
    S(f"s_branch L_{name}_att")
    errs = check_hazards(S.ins, name)
    assert not errs, "\n".join(errs[:20])
    return S.text(), kernel_desc(name, 512, 256, 96), f"; @launch kernel={name} grid=(256,1,1) block=(256,1,1) lds=163840"
```

```python
from asmlib import *
from layout import *

NS = 8; LA = 10; RA = 16; NG = 16; SLOT = 16384
ACC = 16
AR = 80
BR = 0
V_T0 = 1; V_T1 = 2; V_W0 = 3; V_W1 = 4; V_AD = 8
V_EX = 5; V_XO = 6

def a_reads(stage, gi):
    slot = stage % NS
    ks2, nb = divmod(gi, 8)
    st = slot // 4
    off = (slot % 4) * SLOT + (nb >> 2) * 8192 + ks2 * 4096
    d = AR + 4 * ((NG * stage + gi) % RA)
    ad = V_AD + 4 * st + (nb & 3)
    return [f"ds_read_b64_tr_b16 v[{d}:{d+1}], v{ad} offset:{off}",
            f"ds_read_b64_tr_b16 v[{d+2}:{d+3}], v{ad} offset:{off+2048}"]

def load_op(L, q):
    slot = L % NS
    if q < 4:
        hi = q >> 1; half = q & 1
        dst = slot * SLOT + half * 8192 + hi * 4096 - 128 * half
        t = f"s_add_u32 m0, s46, {dst}\ns_nop 0\n"
        t += f"buffer_load_dwordx4 v{V_W0+hi}, s[12:15], s44 offen offset:{128*half} lds"
        if q == 3: t += "\ns_add_u32 s44, s44, 0x20000"
        return t
    k = q - 4; ks2 = k >> 1; mb = k & 1
    d = BR + 16 * slot + 8 * ks2 + 4 * mb
    t = f"buffer_load_dwordx4 a[{d}:{d+3}], v{V_T0+ks2}, s[8:11], s43 offen offset:{1024*mb}"
    if k == 3: t += "\ns_add_u32 s43, s43, 0x4000"
    return t

def stages(S, lst):
    for s in lst:
        for gi in range(NG):
            ks2, nb = divmod(gi, 8)
            a = AR + 4 * ((NG * s + gi) % RA)
            mf = []
            for mb in range(2):
                b = BR + 16 * (s % NS) + 8 * ks2 + 4 * mb
                c = ACC + 8 * nb + 4 * mb
                mf.append(f"v_mfma_f32_16x16x32_bf16 v[{c}:{c+3}], v[{a}:{a+3}], a[{b}:{b+3}], v[{c}:{c+3}]")
            s2, g2 = divmod(NG * s + gi + LA, NG)
            r = a_reads(s2, g2)
            fill = [(0, r[0]), (0, r[1])]
            q = gi - (NG - LA)
            if 0 <= q < 8: fill.append((1, load_op(s + NS - 1, q)))
            weave(S, mf, fill)
            if gi == NG - LA - 1:
                S.wait(vm=8 * (NS - 3)); S("s_barrier")

def gen_k3(name="out_kernel"):
    S = Stream()
    S.raw(kernel_head(name))
    S("s_cmp_ge_u32 s2, 256")
    S(f"s_cbranch_scc1 L_{name}_end")
    S(f"s_load_dwordx2 s[60:61], s[0:1], {KA_WS}")
    S(f"s_load_dwordx2 s[62:63], s[0:1], {KA_WO}")
    S(f"s_load_dwordx2 s[64:65], s[0:1], {KA_WD}")
    S(f"s_load_dwordx2 s[66:67], s[0:1], {KA_X}")
    S(f"s_load_dwordx4 s[68:71], s[0:1], {KA_OUT}")
    S("v_lshrrev_b32 v7, 6, v0")
    S("v_and_b32 v0, 63, v0")
    S("v_readfirstlane_b32 s40, v7")
    S("s_bfe_u32 s41, s2, 0x10002")
    S("s_and_b32 s42, s2, 1\ns_lshl_b32 s42, s42, 3\ns_bfe_u32 s47, s2, 0x30003\ns_add_u32 s42, s42, s47")
    S("s_bfe_u32 s45, s2, 0x10001\ns_lshl_b32 s45, s45, 2\ns_lshr_b32 s47, s2, 6\ns_add_u32 s45, s45, s47")
    S("s_lshl_b32 s46, s40, 10")
    S("v_lshrrev_b32 v16, 3, v0\nv_and_b32 v17, 7, v0")
    S("v_and_b32 v18, 6, v16\nv_xor_b32 v18, v18, v17")
    S("v_lshl_add_u32 v19, v7, 3, v16")
    S(f"v_lshlrev_b32 v{V_W0}, 11, v19\nv_lshl_add_u32 v{V_W0}, v18, 4, v{V_W0}")
    S(f"v_add_u32 v{V_W1}, 0x10000, v{V_W0}")
    S(f"v_lshlrev_b32 v{V_T0}, 4, v0\nv_lshl_add_u32 v{V_T0}, v7, 11, v{V_T0}")
    S(f"v_add_u32 v{V_T1}, 0x2000, v{V_T0}")
    S.raw("s_waitcnt lgkmcnt(0)")
    S(f"s_mov_b32 s48, {128*8192}\ns_mov_b32 s49, {WS_O}\ns_mov_b32 s14, {4096*2048}")
    S("s_cmp_lg_u32 s41, 0")
    S(f"s_cselect_b32 s48, {112*8192}, s48")
    S(f"s_cselect_b32 s49, {WS_H}, s49")
    S("s_cselect_b32 s12, s64, s62\ns_cselect_b32 s13, s65, s63")
    S(f"s_cselect_b32 s14, {3584*2048}, s14")
    S("s_cselect_b32 s47, 7, 8")
    S("s_mul_i32 s50, s42, s48\ns_add_u32 s50, s50, s49")
    S("s_add_u32 s8, s60, s50\ns_addc_u32 s9, s61, 0\ns_mov_b32 s10, s48\ns_mov_b32 s11, 0x20000")
    S("s_lshl_b32 s50, s45, 8")
    S("s_add_u32 s12, s12, s50\ns_addc_u32 s13, s13, 0\ns_sub_u32 s14, s14, s50\ns_mov_b32 s15, 0x20000")
    S("s_mov_b32 s43, 0\ns_mov_b32 s44, 0")
    for L in range(NS - 1):
        for q in range(8): S(load_op(L, q))
    S("v_bfe_u32 v16, v0, 2, 3\nv_lshrrev_b32 v17, 1, v16\nv_lshrrev_b32 v18, 5, v0\nv_and_b32 v19, 3, v0")
    S("v_lshlrev_b32 v20, 10, v18\nv_lshl_add_u32 v20, v16, 7, v20\nv_lshl_add_u32 v20, v17, 5, v20\nv_lshl_add_u32 v20, v19, 3, v20")
    for nbl in range(4):
        S(f"v_xor_b32 v{V_AD+nbl}, {32*nbl}, v20")
        S(f"v_add_u32 v{V_AD+4+nbl}, 0x10000, v{V_AD+nbl}")
    S(f"v_lshlrev_b32 v{V_EX}, 4, v0\nv_lshl_add_u32 v{V_EX}, v7, 13, v{V_EX}")
    S("v_and_b32 v16, 15, v0\nv_lshl_add_u32 v16, v7, 5, v16\nv_lshlrev_b32 v16, 11, v16")
    S("v_bfe_u32 v17, v0, 4, 1\nv_lshl_add_u32 v16, v17, 5, v16")
    S(f"v_lshrrev_b32 v17, 5, v0\nv_lshl_add_u32 v{V_XO}, v17, 4, v16")
    S("s_lshl_b32 s51, s42, 3\ns_add_u32 s51, s51, s45")
    S(f"s_lshl_b32 s52, s51, 15\ns_add_u32 s52, s52, {WS_EX}")
    S("s_lshl_b32 s53, s41, 22\ns_add_u32 s54, s52, s53")
    S("s_xor_b32 s53, s53, 0x400000\ns_add_u32 s55, s52, s53")
    S("s_add_u32 s16, s60, s54\ns_addc_u32 s17, s61, 0\ns_mov_b32 s18, 0x8000\ns_mov_b32 s19, 0x20000")
    S("s_add_u32 s20, s60, s55\ns_addc_u32 s21, s61, 0\ns_mov_b32 s22, 0x8000\ns_mov_b32 s23, 0x20000")
    S("s_lshl_b32 s52, s42, 18\ns_add_u32 s52, s52, s50")
    S("s_sub_u32 s53, 0x400000, s52")
    S("s_add_u32 s24, s66, s52\ns_addc_u32 s25, s67, 0\ns_mov_b32 s26, s53\ns_mov_b32 s27, 0x20000")
    S("s_add_u32 s28, s68, s52\ns_addc_u32 s29, s69, 0\ns_mov_b32 s30, s53\ns_mov_b32 s31, 0x20000")
    S("s_mov_b32 s32, s70\ns_mov_b32 s33, s71\ns_mov_b32 s34, 256\ns_mov_b32 s35, 0x20000")
    S("s_lshl_b32 s56, s51, 2\ns_add_u32 s56, s56, s40")
    S("s_lshr_b32 s57, s56, 4\ns_lshl_b32 s57, s57, 2")
    S("s_and_b32 s58, s56, 15\ns_lshl_b32 s58, s58, 1")
    for i in range(64): S(f"v_mov_b32 v{ACC+i}, 0")
    S.wait(vm=8 * (NS - 2))
    S("s_barrier")
    for gi in range(LA):
        for x in a_reads(0, gi): S(x)
    n0 = len(S.ins)
    S.raw(".p2align 6"); S.raw(f"L_{name}_g:")
    stages(S, range(NS))
    body1 = [x.text for x in S.ins[n0:]]
    S2 = Stream(); S2.set_state(S.state())
    S2.raw(".p2align 6"); S2.raw(f"L_{name}_g:")
    stages(S2, range(NS, 2 * NS))
    assert body1 == [x.text for x in S2.ins], "k3 loop not steady"
    errs = check_hazards(S.ins[n0:] + S2.ins, "k3loop"); assert not errs, "\n".join(errs[:10])
    S("s_sub_u32 s47, s47, 1\ns_cmp_lg_u32 s47, 0")
    S(f"s_cbranch_scc1 L_{name}_g")
    S.wait(vm=0, lg=0)
    S("v_mov_b32 v144, 0")
    S("buffer_load_dword v145, v144, s[32:35], s57 offen sc0 sc1")
    S("s_mov_b32 s59, 0xffff0000")
    S("s_cmp_eq_u32 s41, 0")
    S(f"s_cbranch_scc1 L_{name}_pack")
    T = 80
    for i in range(32): S(f"v_cvt_pk_bf16_f32 v{T+i}, v{ACC+2*i}, v{ACC+2*i+1}")
    for i in range(32):
        S(f"v_lshlrev_b32 v{ACC+2*i}, 16, v{T+i}")
        S(f"v_and_b32 v{ACC+2*i+1}, s59, v{T+i}")
    for i in range(64): S(f"v_mul_f32 v{T+i}, 0xbfb8aa3b, v{ACC+i}")
    for i in range(64): S(f"v_exp_f32 v{T+i}, v{T+i}")
    for i in range(64): S(f"v_add_f32 v{T+i}, 1.0, v{T+i}")
    for i in range(64): S(f"v_rcp_f32 v{T+i}, v{T+i}")
    for i in range(64): S(f"v_mul_f32 v{ACC+i}, v{ACC+i}, v{T+i}")
    S.raw(f"L_{name}_pack:")
    M = 80
    for i in range(32): S(f"v_cvt_pk_bf16_f32 v{M+i}, v{ACC+2*i}, v{ACC+2*i+1}")
    S.wait(vm=0)
    S("v_readfirstlane_b32 s36, v145")
    S("s_nop 1")
    S("s_lshr_b32 s36, s36, s58\ns_and_b32 s36, s36, 3\ns_cmp_lg_u32 s36, 0")
    S(f"s_cbranch_scc1 L_{name}_final")
    for i in range(8):
        S(f"s_mov_b32 s36, {4096*(i//4)}")
        S(f"buffer_store_dwordx4 v[{M+4*i}:{M+4*i+3}], v{V_EX}, s[16:19], s36 offen offset:{1024*(i%4)} sc0 sc1")
    S("s_lshl_b32 s36, 1, s58")
    S("v_mov_b32 v145, s36")
    S.wait(vm=0)
    S("s_mov_b64 s[38:39], exec\ns_mov_b64 exec, 1")
    S("buffer_atomic_add v145, v144, s[32:35], s57 offen sc0 sc1")
    S.wait(vm=0)
    S("s_mov_b64 exec, s[38:39]")
    S("v_readfirstlane_b32 s36, v145")
    S("s_nop 1")
    S("s_lshr_b32 s36, s36, s58\ns_and_b32 s36, s36, 3\ns_cmp_eq_u32 s36, 0")
    S(f"s_cbranch_scc1 L_{name}_end")
    S.raw(f"L_{name}_final:")
    Pn = 112; X = 144
    for i in range(8):
        S(f"s_mov_b32 s36, {4096*(i//4)}")
        S(f"buffer_load_dwordx4 v[{Pn+4*i}:{Pn+4*i+3}], v{V_EX}, s[20:23], s36 offen offset:{1024*(i%4)} sc0 sc1")
    S("s_mov_b32 s37, 0x8000")
    for pr in range(4):
        for mb in range(2):
            d = X + 8 * pr + 4 * mb
            S(f"buffer_load_dwordx4 v[{d}:{d+3}], v{V_XO}, s[24:27], {'s37' if mb else '0'} offen offset:{64*pr}")
    A = 16; B = 176
    for i in range(32):
        S(f"v_lshlrev_b32 v{A+2*i}, 16, v{M+i}")
        S(f"v_and_b32 v{A+2*i+1}, s59, v{M+i}")
    for i in range(32):
        S(f"v_lshlrev_b32 v{B+2*i}, 16, v{Pn+i}")
        S(f"v_and_b32 v{B+2*i+1}, s59, v{Pn+i}")
    for i in range(64): S(f"v_mul_f32 v{A+i}, v{A+i}, v{B+i}")
    for pr in range(4):
        for mb in range(2):
            for sub in range(2):
                for h in range(2):
                    src = A + 8 * (2 * pr + sub) + 4 * mb + 2 * h
                    S(f"v_cvt_pk_bf16_f32 v{M + 8*pr + 4*mb + 2*sub + h}, v{src}, v{src+1}")
    S("s_nop 1")
    for k in range(8):
        S(f"v_permlane16_swap_b32 v{M+4*k}, v{M+4*k+2}")
        S(f"v_permlane16_swap_b32 v{M+4*k+1}, v{M+4*k+3}")
    for i in range(32):
        S(f"v_lshlrev_b32 v{A+2*i}, 16, v{M+i}")
        S(f"v_and_b32 v{A+2*i+1}, s59, v{M+i}")
    for i in range(32):
        S(f"v_lshlrev_b32 v{B+2*i}, 16, v{X+i}")
        S(f"v_and_b32 v{B+2*i+1}, s59, v{X+i}")
    for i in range(64): S(f"v_add_f32 v{A+i}, v{A+i}, v{B+i}")
    for i in range(32): S(f"v_cvt_pk_bf16_f32 v{M+i}, v{A+2*i}, v{A+2*i+1}")
    for pr in range(4):
        for mb in range(2):
            d = M + 8 * pr + 4 * mb
            S(f"buffer_store_dwordx4 v[{d}:{d+3}], v{V_XO}, s[28:31], {'s37' if mb else '0'} offen offset:{64*pr}")
    S.raw(f"L_{name}_end:")
    S("s_endpgm")
    errs = check_hazards(S.ins, name)
    assert not errs, "\n".join(errs[:20])
    return S.text(), kernel_desc(name, 384, 256, 96), f"; @launch kernel={name} grid=(256,1,1) block=(256,1,1) lds={NS*SLOT}"
```

```python
WS_XN = 0
WS_H = 4 * 1024 * 1024
WS_O = 20 * 1024 * 1024
WS_EX = 36 * 1024 * 1024
H_BYTES = 2048 * 3584 * 2
O_BYTES = 2048 * 4096 * 2
KA_X, KA_K, KA_V, KA_WQ, KA_WO, KA_BX, KA_WG, KA_WU, KA_WD, KA_OUT, KA_DBG, KA_WS = [8 * i for i in range(12)]
```

```python
import sys
from k1_ln import gen_k1
from k2_main import gen_k2
from k3v2 import gen_k3
ks = [gen_k1(), gen_k2(), gen_k3()]
out = ["; generated by gen/gen.py: LN -> (QGU GEMM + attention) -> (out/down GEMMs + combine)"]
out += [k[2] for k in ks]
out.append('.amdgcn_target "amdgcn-amd-amdhsa--gfx950"\n.text')
out += [k[0] for k in ks]
out.append('.section .rodata,"a"')
out += [k[1] for k in ks]
path = sys.argv[1] if len(sys.argv) > 1 else "recurrent_scan__mha_block_cached__geglu_ffn__prompt.s"
open(path, "w").write("\n".join(out) + "\n")
print("wrote", path)
```

```python
import re

REG_RE = re.compile(r"\b([vas])(\d+)\b|\b([vas])\[(\d+):(\d+)\]")

def regs_of(op):
    out = []
    for m in REG_RE.finditer(op):
        if m.group(1):
            out.append((m.group(1), int(m.group(2))))
        else:
            out += [(m.group(3), i) for i in range(int(m.group(4)), int(m.group(5)) + 1)]
    if re.search(r"\bvcc\b", op): out.append(("s", 106))
    if re.search(r"\bm0\b", op): out.append(("s", 124))
    if re.search(r"\bexec\b", op): out.append(("s", 126))
    return out

TRANS = ("v_exp_f32", "v_log_f32", "v_rcp_f32", "v_rsq_f32", "v_sqrt_f32", "v_sin_f32", "v_cos_f32")

class Ins:
    __slots__ = ("text", "mn", "kind", "rd", "wr", "srcc", "passes", "nop")
    def __init__(self, text):
        self.text = text
        t = text.split(";")[0].strip()
        self.rd = []; self.wr = []; self.srcc = []; self.passes = 0; self.nop = 1
        if not t or t.endswith(":") or t.startswith("."):
            self.mn = ""; self.kind = "label" if t.endswith(":") else "none"; self.nop = 0
            return
        parts = t.split(None, 1)
        mn = self.mn = parts[0]
        rest = parts[1] if len(parts) > 1 else ""
        ops = [o.strip() for o in re.split(r",(?![^\[]*\])", rest)] if rest else []
        R = [regs_of(o) for o in ops]
        flat = lambda l: [x for y in l for x in y]
        if mn.startswith("v_mfma"):
            self.kind = "mfma"; self.wr = R[0]; self.rd = R[1] + R[2]; self.srcc = R[3]
            self.passes = 8 if "32x32x16" in mn else 4
        elif mn.startswith("ds_read") or mn.startswith("ds_bpermute") or mn.startswith("ds_swizzle") or mn.startswith("ds_permute"):
            self.kind = "dsr"; self.wr = R[0]; self.rd = flat(R[1:])
        elif mn.startswith("ds_"):
            self.kind = "dsw"; self.rd = flat(R)
        elif mn.startswith("buffer_load") or mn.startswith("global_load"):
            if re.search(r"\blds\b", rest) or "_lds_" in mn:
                self.kind = "dma"; self.rd = flat(R) + [("s", 124)]
            else:
                self.kind = "vld"; self.wr = R[0]; self.rd = flat(R[1:])
        elif mn.startswith("buffer_store") or mn.startswith("global_store"):
            self.kind = "vst"; self.rd = flat(R)
        elif mn.startswith("buffer_atomic") or mn.startswith("global_atomic"):
            self.kind = "vld" if re.search(r"\bsc0\b", rest) else "vst"
            self.rd = flat(R)
            if self.kind == "vld": self.wr = R[0]
        elif mn.startswith("buffer_") :
            self.kind = "vst"
        elif mn.startswith("v_"):
            self.kind = "trans" if mn.split("_e")[0] in TRANS else "valu"
            if "permlane" in mn and "swap" in mn:
                self.wr = R[0] + R[1]; self.rd = R[0] + R[1]
            elif mn.startswith("v_cmp"):
                self.wr = R[0]; self.rd = flat(R[1:])
            elif "_co_" in mn:
                self.wr = R[0] + R[1]; self.rd = flat(R[2:])
            else:
                self.wr = R[0]; self.rd = flat(R[1:])
                if mn.startswith("v_fmac") or mn.startswith("v_pk_fmac") or mn.startswith("v_dot2c") or mn.startswith("v_writelane"):
                    self.rd += R[0]
        elif mn == "s_nop":
            self.kind = "salu"; self.nop = int(ops[0], 0) + 1
        elif mn == "s_waitcnt":
            self.kind = "wait"
        elif mn.startswith("s_load") or mn.startswith("s_memtime") or mn.startswith("s_memrealtime") or mn.startswith("s_buffer_load"):
            self.kind = "smem"; self.wr = R[0]; self.rd = flat(R[1:])
        elif mn.startswith("s_cbranch") or mn == "s_branch" or mn == "s_endpgm" or mn == "s_barrier" or mn.startswith("s_setprio") or mn.startswith("s_sleep"):
            self.kind = "ctl"
        elif mn.startswith("s_cmp"):
            self.kind = "salu"; self.rd = flat(R)
        else:
            self.kind = "salu"; self.wr = R[0] if R else []; self.rd = flat(R[1:])

class Stream:
    def __init__(self):
        self.ins = []
        self.lg = []
        self.vm = []
        self.auto = True
    def state(self):
        return ([set(x) for x in self.lg], [set(x) for x in self.vm])
    def set_state(self, st):
        self.lg = [set(x) for x in st[0]]; self.vm = [set(x) for x in st[1]]
    def raw(self, text):
        self.ins.append(Ins(text))
    def wait(self, vm=None, lg=None):
        p = []
        if vm is not None:
            assert vm <= 63
            p.append(f"vmcnt({vm})")
            if len(self.vm) > vm: self.vm = self.vm[len(self.vm) - vm:] if vm else []
        if lg is not None:
            assert lg <= 15
            p.append(f"lgkmcnt({lg})")
            if len(self.lg) > lg: self.lg = self.lg[len(self.lg) - lg:] if lg else []
        self.raw("s_waitcnt " + " ".join(p))
    def __call__(self, text):
        for line in text.split("\n"):
            line = line.strip()
            if line: self.emit1(line)
    def emit1(self, text):
        i = Ins(text)
        if i.kind == "wait":
            m = re.search(r"vmcnt\((\d+)\)", text); n = re.search(r"lgkmcnt\((\d+)\)", text)
            self.wait(int(m.group(1)) if m else None, int(n.group(1)) if n else None)
            return
        if self.auto:
            touched = set(i.rd) | set(i.wr) | set(i.srcc)
            need_lg = None; need_vm = None
            for k in range(len(self.lg) - 1, -1, -1):
                if self.lg[k] & touched:
                    need_lg = len(self.lg) - 1 - k; break
            for k in range(len(self.vm) - 1, -1, -1):
                if self.vm[k] & touched:
                    need_vm = len(self.vm) - 1 - k; break
            if need_lg is not None or need_vm is not None:
                if need_lg is not None: need_lg = min(need_lg, 15)
                if need_vm is not None: need_vm = min(need_vm, 63)
                self.wait(need_vm, need_lg)
        self.ins.append(i)
        if i.kind == "dsr": self.lg.append(set(i.wr))
        elif i.kind == "dsw": self.lg.append(set())
        elif i.kind == "vld": self.vm.append(set(i.wr))
        elif i.kind in ("dma", "vst"): self.vm.append(set())
        elif i.kind == "smem":
            pass
    def text(self):
        return "\n".join(x.text for x in self.ins)

def check_hazards(ins, name=""):
    errs = []
    hist = []
    pos = 0
    for i in ins:
        if i.kind in ("label", "none"): continue
        rd = set(i.rd); wr = set(i.wr); sc = set(i.srcc)
        for (p, ppos) in reversed(hist):
            d = pos - ppos - p.nop
            if d > 20: break
            pw = set(p.wr)
            need = 0; why = ""
            if p.kind in ("valu", "trans"):
                if i.kind == "mfma" and pw & (rd | sc): need = 2; why = "valu->mfma"
                if p.kind == "trans" and i.kind == "valu" and pw & rd: need = max(need, 1); why = "trans->valu"
                if p.kind == "trans" and i.kind == "mfma" and pw & (rd | sc): need = 2
                if i.mn.startswith("v_readfirstlane") or i.mn.startswith("v_readlane"):
                    if pw & rd: need = max(need, 1); why = "valu->readlane"
                if "permlane" in i.mn and pw & rd: need = max(need, 2); why = "valu->permlane"
                if "dpp" in i.text and pw & rd: need = max(need, 2); why = "valu->dpp"
                sw = {r for r in pw if r[0] == "s"}
                if sw:
                    if i.kind in ("vld", "vst", "dma") and sw & rd: need = max(need, 5); why = "valu sgpr->vmem"
                    if i.kind in ("valu", "trans") and sw & rd: need = max(need, 2); why = "valu sgpr->valu"
                    if i.kind in ("salu",) and sw & rd: need = max(need, 1); why = "valu sgpr->salu(pad)"
            if p.kind == "mfma":
                big = p.passes == 8
                if i.kind == "mfma":
                    if pw & rd: need = 12 if big else 8; why = "mfma D->A/B"
                    if pw & sc and not (pw == sc and p.passes == i.passes): need = max(need, 10 if big else 6); why = "mfma D->C overlap"
                    if pw & wr and not (pw == sc): need = max(need, 10 if big else 6); why = "mfma D->D waw"
                elif i.kind in ("valu", "trans", "dsr", "dsw", "vld", "vst", "dma"):
                    if pw & (rd | wr): need = 12 if big else 8; why = "mfma D->valu/mem"
                if i.kind in ("valu", "trans") and set(p.srcc) & wr: need = max(need, 7 if big else 3); why = "mfma C war"
            if p.kind == "salu" and ("s", 124) in pw and i.kind == "dma": need = 1; why = "m0->dma"
            if p.kind == "vst" and ("x4" in p.mn or "x3" in p.mn) and set(p.rd) & wr and i.kind in ("valu", "trans", "mfma", "dsr", "vld"):
                need = max(need, 2); why = "store data war"
            if d < need:
                errs.append(f"{name}: {why} need {need} have {d}: [{p.text}] -> [{i.text}]")
        hist.append((i, pos)); pos += i.nop
        if len(hist) > 40: hist.pop(0)
    return errs

def weave(S, mfmas, fill):
    n = len(mfmas)
    slots = [[] for _ in range(n + 1)]
    for p, t in fill:
        p = max(-1, min(n - 1, p))
        slots[p + 1].append(t)
    for t in slots[0]: S(t)
    for k in range(n):
        S(mfmas[k])
        for t in slots[k + 1]: S(t)

def kernel_desc(name, vgprs, accum, sgprs=102):
    return f""".p2align 6
.amdhsa_kernel {name}
  .amdhsa_next_free_vgpr {vgprs}
  .amdhsa_next_free_sgpr {sgprs}
  .amdhsa_accum_offset {accum}
  .amdhsa_group_segment_fixed_size 0
  .amdhsa_kernarg_size 96
  .amdhsa_user_sgpr_count 2
  .amdhsa_user_sgpr_kernarg_segment_ptr 1
  .amdhsa_system_sgpr_workgroup_id_x 1
.end_amdhsa_kernel"""

def kernel_head(name):
    return f".globl {name}\n.p2align 8\n.type {name},@function\n{name}:"


import os
STAMPS = bool(os.environ.get("STAMPS"))
WS_DBG = 64 * 1024 * 1024
def stamp(S, i, base=84):
    if not STAMPS: return
    S.raw("s_memrealtime s[98:99]")
    S.raw("s_waitcnt lgkmcnt(0)")
    S.lg = []
    S.raw(f"s_mov_b32 s{base+i}, s98")
def stamp_dump(S, kidx, n, ws="s[60:61]", wave="s40", base=84, vt=250):
    if not STAMPS: return
    lo, hi = [int(x) for x in ws[2:-1].split(":")]
    S(f"s_add_u32 s96, s{lo}, {WS_DBG + kidx*1048576}\ns_addc_u32 s97, s{hi}, 0\ns_mov_b32 s98, 0x100000\ns_mov_b32 s99, 0x20000")
    S(f"s_lshl_b32 s100, s2, 3\ns_add_u32 s100, s100, {wave}\ns_lshl_b32 s100, s100, 6")
    S(f"v_mov_b32 v{vt}, 0")
    for i in range(n):
        S(f"v_mov_b32 v{vt+1}, s{base+i}")
        S(f"buffer_store_dword v{vt+1}, v{vt}, s[96:99], s100 offen offset:{4*i}")
        S.wait(vm=0)
```

```python
from asmlib import *
from layout import *

def gen_k1(name="ln_kernel"):
    S = Stream()
    S.raw(kernel_head(name))
    S("s_cmp_ge_u32 s2, 256")
    S(f"s_cbranch_scc1 L_{name}_end")
    S(f"s_load_dwordx2 s[4:5], s[0:1], {KA_X}")
    S(f"s_load_dwordx2 s[6:7], s[0:1], {KA_WS}")
    S("v_and_b32 v1, 7, v0")
    S("v_bfe_u32 v2, v0, 3, 3")
    S("v_lshrrev_b32 v3, 6, v0")
    S("v_lshlrev_b32 v4, 11, v1")
    S("v_lshl_add_u32 v4, v2, 4, v4")
    S("v_lshl_add_u32 v4, v3, 9, v4")
    S("s_lshl_b32 s3, s2, 14")
    S.raw("s_waitcnt lgkmcnt(0)")
    S("s_mov_b32 s8, s4\ns_mov_b32 s9, s5\ns_mov_b32 s10, 0x400000\ns_mov_b32 s11, 0x20000")
    S(f"s_add_u32 s12, s6, {WS_XN}\ns_addc_u32 s13, s7, 0\ns_mov_b32 s14, 0x400000\ns_mov_b32 s15, 0x20000")
    for i in range(4):
        S(f"buffer_load_dwordx4 v[{8+4*i}:{11+4*i}], v4, s[8:11], s3 offen offset:{128*i} nt")
    S(f"s_add_u32 s24, s6, {WS_FL}\ns_addc_u32 s25, s7, 0\ns_mov_b32 s26, 0x10000\ns_mov_b32 s27, 0x20000")
    S("s_lshl_b32 s21, s2, 8")
    S("v_lshlrev_b32 v5, 2, v0\nv_mov_b32 v6, 0")
    S("v_cmp_gt_u32 vcc, 64, v0")
    S("s_nop 1")
    S("s_and_saveexec_b64 s[22:23], vcc")
    S("buffer_store_dword v6, v5, s[24:27], s21 offen")
    S("s_mov_b64 exec, s[22:23]")
    S("v_lshrrev_b32 v5, 2, v2")
    S("v_lshl_add_u32 v5, v3, 3, v5")
    S("v_lshlrev_b32 v5, 14, v5")
    S("v_and_b32 v6, 3, v2")
    S("v_lshl_add_u32 v5, v6, 8, v5")
    S("v_lshl_add_u32 v5, v1, 4, v5")
    S("s_lshr_b32 s16, s2, 5\ns_lshl_b32 s16, s16, 19")
    S("s_bfe_u32 s17, s2, 0x40001\ns_lshl_b32 s17, s17, 10\ns_add_u32 s16, s16, s17")
    S("s_and_b32 s17, s2, 1\ns_lshl_b32 s17, s17, 7\ns_add_u32 s16, s16, s17")
    S("s_add_u32 s17, s16, 32768\ns_add_u32 s18, s16, 65536\ns_add_u32 s19, s16, 98304")
    S("v_bfe_u32 v6, v0, 4, 2")
    S("v_lshl_add_u32 v6, v3, 2, v6")
    S("v_lshlrev_b32 v6, 2, v6")
    S("v_lshlrev_b32 v7, 6, v1")
    S("v_add_u32 v6, v6, v7")
    S("s_mov_b32 s20, 0xffff0000")
    for i in range(16):
        S(f"v_lshlrev_b32 v{32+2*i}, 16, v{8+i}")
        S(f"v_and_b32 v{33+2*i}, s20, v{8+i}")
    def reduce(src_regs, off):
        cur = list(src_regs)
        t = 64
        nxt = []
        for i in range(0, 32, 2):
            S(f"v_add_f32 v{t+i//2}, v{cur[i]}, v{cur[i+1]}"); nxt.append(t + i // 2)
        cur = nxt
        while len(cur) > 1:
            nxt = []
            for i in range(0, len(cur), 2):
                S(f"v_add_f32 v{cur[i]}, v{cur[i]}, v{cur[i+1]}"); nxt.append(cur[i])
            cur = nxt
        S("s_nop 1")
        S(f"v_add_f32_dpp v65, v64, v64 row_ror:8 row_mask:0xf bank_mask:0xf")
        S(f"ds_write_b32 v6, v65 offset:{off}")
        S.wait(lg=0)
        S("s_barrier")
        for i in range(4):
            S(f"ds_read_b128 v[{64+4*i}:{67+4*i}], v7 offset:{off+16*i}")
        cur = list(range(64, 80))
        while len(cur) > 1:
            nxt = []
            for i in range(0, len(cur), 2):
                S(f"v_add_f32 v{cur[i]}, v{cur[i]}, v{cur[i+1]}"); nxt.append(cur[i])
            cur = nxt
        S("v_mul_f32 v80, 0x3a800000, v64")
    reduce(range(32, 64), 0)
    S("v_mov_b32 v81, v80")
    for i in range(32):
        S(f"v_sub_f32 v{96+i}, v{32+i}, v81")
    for i in range(32):
        S(f"v_mul_f32 v{96+i}, v{96+i}, v{96+i}")
    reduce(range(96, 128), 512)
    S("v_cvt_pk_bf16_f32 v82, v81, v80")
    S("v_lshlrev_b32 v83, 16, v82")
    S("v_and_b32 v84, s20, v82")
    S("v_add_f32 v84, 0x3727c5ac, v84")
    S("v_cvt_pk_bf16_f32 v84, v84, v84")
    S("v_and_b32 v84, s20, v84")
    S("v_sqrt_f32 v84, v84")
    S("s_nop 0")
    S("v_cvt_pk_bf16_f32 v84, v84, v84")
    S("v_and_b32 v84, s20, v84")
    S("v_rcp_f32 v85, v84")
    for i in range(32):
        S(f"v_sub_f32 v{32+i}, v{32+i}, v83")
    for i in range(16):
        S(f"v_cvt_pk_bf16_f32 v{8+i}, v{32+2*i}, v{33+2*i}")
    for i in range(16):
        S(f"v_lshlrev_b32 v{32+2*i}, 16, v{8+i}")
        S(f"v_and_b32 v{33+2*i}, s20, v{8+i}")
    for i in range(32):
        S(f"v_mul_f32 v{32+i}, v{32+i}, v85")
    for i in range(16):
        S(f"v_cvt_pk_bf16_f32 v{8+i}, v{32+2*i}, v{33+2*i}")
        if i % 4 == 3:
            S(f"buffer_store_dwordx4 v[{8+i-3}:{8+i}], v5, s[12:15], s{16+i//4} offen")
    S.raw(f"L_{name}_end:")
    S("s_endpgm")
    errs = check_hazards(S.ins, name)
    assert not errs, "\n".join(errs)
    return S.text(), kernel_desc(name, 128, 128, 32), f"; @launch kernel={name} grid=(256,1,1) block=(256,1,1) lds=1024"
```

```python
from asmlib import *
from layout import *
import os

NSL = int(os.environ.get("K3_NSL", 10))
BI = int(os.environ.get("K3_BI", 1))
DL = int(os.environ.get("K3_DL", 4))
DE = int(os.environ.get("K3_DE", NSL))
EXP = os.environ.get("K3_EXP", "")
SLOT = 16384
PA = os.environ.get("K3_PA", ""); PW = os.environ.get("K3_PW", ""); PAE = os.environ.get("K3_PAE", PA); PWE = os.environ.get("K3_PWE", PW)
ACC = 16
WF = 80
TF = 112
XR = 144
V_LA = 1; V_LW = 2
V_A = 6; V_W = 7
V_EX = 11; V_XO = 12
PN = 176
PEEK = int(os.environ.get("K3_PEEK", 4)); PCHK = int(os.environ.get("K3_PCHK", 1))

def comp_step(S, par, bar):
    S.wait(lg=0)
    if bar: S("s_barrier")
    mf = []
    for nbl in range(4):
        for mb in range(4):
            c = ACC + 16 * nbl + 4 * mb
            a = WF + 16 * par + 4 * nbl; b = TF + 16 * par + 4 * mb
            mf.append(f"v_mfma_f32_16x16x32_bf16 v[{c}:{c+3}], v[{a}:{a+3}], v[{b}:{b+3}], v[{c}:{c+3}]")
    q = par ^ 1
    rd = []
    for i in range(4):
        d = TF + 16 * q + 4 * i
        rd.append(f"ds_read_b128 v[{d}:{d+3}], v{V_A} offset:{1024*i}")
        d = WF + 16 * q + 4 * i
        rd.append(f"ds_read_b64_tr_b16 v[{d}:{d+1}], v{V_W+i}")
        rd.append(f"ds_read_b64_tr_b16 v[{d+2}:{d+3}], v{V_W+i} offset:2048")
    if "noread" in EXP: rd = []
    fill = []
    pos = [0, 0, 1, 1, 2, 3, 4, 5, 6, 7, 8, 9]
    for p, r in zip(pos, rd): fill.append((p, r))
    fill.append((9, f"s_add_u32 s50, s50, {SLOT}"))
    fill.append((9, f"s_cmp_eq_u32 s50, {NSL*SLOT}"))
    fill.append((10, "s_cselect_b32 s50, 0, s50"))
    fill.append((11, f"v_add_u32 v{V_A}, s50, v{V_LA}"))
    for i in range(4): fill.append((12 + i, f"v_add_u32 v{V_W+i}, s50, v{V_LW+i}"))
    if "nomfma" in EXP:
        for _, t in fill: S(t)
    else:
        weave(S, mf, fill)

def gen_k3(name="out_kernel"):
    S = Stream()
    S.raw(kernel_head(name))
    S("s_cmp_ge_u32 s2, 256")
    S(f"s_cbranch_scc1 L_{name}_end")
    S(f"s_load_dwordx2 s[60:61], s[0:1], {KA_WS}")
    S(f"s_load_dwordx2 s[62:63], s[0:1], {KA_WO}")
    S(f"s_load_dwordx2 s[64:65], s[0:1], {KA_WD}")
    S(f"s_load_dwordx2 s[66:67], s[0:1], {KA_X}")
    S(f"s_load_dwordx4 s[68:71], s[0:1], {KA_OUT}")
    S("v_lshrrev_b32 v15, 6, v0")
    S("v_and_b32 v0, 63, v0")
    S("v_readfirstlane_b32 s40, v15")
    S("s_bfe_u32 s41, s2, 0x10002")
    S("s_and_b32 s42, s2, 1\ns_lshl_b32 s42, s42, 3\ns_bfe_u32 s47, s2, 0x30003\ns_add_u32 s42, s42, s47")
    S("s_bfe_u32 s45, s2, 0x10001\ns_lshl_b32 s45, s45, 2\ns_lshr_b32 s46, s2, 6\ns_add_u32 s45, s45, s46")
    S("s_movk_i32 s51, 128")
    S("s_cmp_lg_u32 s41, 0")
    S(f"s_cselect_b32 s51, {112}, s51")
    stamp(S, 0)
    S("s_cmp_lt_u32 s40, 4")
    S(f"s_cbranch_scc1 L_{name}_comp")
    S("v_lshrrev_b32 v16, 3, v0\nv_and_b32 v17, 7, v0")
    S("v_and_b32 v18, 6, v16\nv_xor_b32 v18, v18, v17")
    S("v_lshlrev_b32 v19, 11, v16\nv_lshl_add_u32 v19, v18, 4, v19")
    S("v_lshlrev_b32 v20, 4, v0")
    S.raw("s_waitcnt lgkmcnt(0)")
    S(f"s_mov_b32 s48, {128*8192}\ns_mov_b32 s49, {WS_O}\ns_mov_b32 s14, {4096*2048}")
    S("s_cmp_lg_u32 s41, 0")
    S(f"s_cselect_b32 s48, {112*8192}, s48")
    S(f"s_cselect_b32 s49, {WS_H}, s49")
    S("s_cselect_b32 s12, s64, s62\ns_cselect_b32 s13, s65, s63")
    S(f"s_cselect_b32 s14, {3584*2048}, s14")
    S("s_mul_i32 s50, s42, s48\ns_add_u32 s50, s50, s49")
    S("s_add_u32 s8, s60, s50\ns_addc_u32 s9, s61, 0\ns_mov_b32 s10, s48\ns_mov_b32 s11, 0x20000")
    S("s_lshl_b32 s50, s45, 8")
    S("s_add_u32 s12, s12, s50\ns_addc_u32 s13, s13, 0\ns_sub_u32 s14, s14, s50\ns_mov_b32 s15, 0x20000")
    S("s_mov_b32 s43, 0\ns_mov_b32 s44, 0\ns_mov_b32 s50, 0")
    S("s_lshl_b32 s46, s46, 1")
    plan = {4: ([0, 1], [0], DE), 5: ([2, 3], [1, 2], DL), 6: ([4, 5], [3, 4], DL), 7: ([6, 7], [5, 6, 7], DL)}
    for w in (4, 5, 6, 7):
        ap, wp, D = plan[w]
        if w < 7:
            S(f"s_cmp_lg_u32 s40, {w}")
            S(f"s_cbranch_scc1 L_{name}_ld{w+1}")
        for i, p in enumerate(ap):
            S(f"s_add_u32 s52, s46, {p}\ns_and_b32 s52, s52, 7\ns_lshl_b32 s{53+i}, s52, 10")
            S(f"v_add_u32 v{24+i}, s{53+i}, v20")
        for i, p in enumerate(wp):
            k = len(ap) + i
            S(f"s_add_u32 s52, s47, {p}\ns_and_b32 s52, s52, 7\ns_lshl_b32 s{53+k}, s52, 10\ns_add_u32 s{53+k}, s{53+k}, 8192")
            S(f"s_and_b32 s59, s52, 3\ns_lshl_b32 s59, s59, 14\ns_lshr_b32 s52, s52, 2\ns_lshl_b32 s52, s52, 7\ns_add_u32 s59, s59, s52")
            S(f"v_add_u32 v{24+k}, s59, v19")
        npc = len(ap) + len(wp)
        def issue():
            for i in range(npc):
                S(f"s_add_u32 m0, s50, s{53+i}")
                if i < len(ap):
                    S("s_nop 0")
                    S(f"buffer_load_dwordx4 v{24+i}, s[8:11], s43 offen {PAE if w == 4 else PA} lds")
                else:
                    S("s_nop 0")
                    S(f"buffer_load_dwordx4 v{24+i}, s[12:15], s44 offen {PWE if w == 4 else PW} lds")
            S(f"s_add_u32 s43, s43, 8192\ns_add_u32 s44, s44, 0x10000")
            S(f"s_add_u32 s50, s50, {SLOT}\ns_cmp_eq_u32 s50, {NSL*SLOT}\ns_cselect_b32 s50, 0, s50")
        for u in range(D - BI + 1): issue()
        S.wait(vm=min(63, (D - BI) * npc))
        S("s_barrier")
        S(f"s_lshr_b32 s51, s51, {BI-1}")
        S.raw(f"L_{name}_ldl{w}:")
        S.wait(vm=(D - 2 * BI) * npc)
        S("s_barrier")
        for u in range(BI): issue()
        S("s_sub_u32 s51, s51, 1\ns_cmp_lg_u32 s51, 0")
        S(f"s_cbranch_scc1 L_{name}_ldl{w}")
        S.wait(vm=0)
        S("s_endpgm")
        if w < 7: S.raw(f"L_{name}_ld{w+1}:")
    S.raw(f"L_{name}_comp:")
    S.lg = []; S.vm = []
    S("s_setprio 3")
    S("v_and_b32 v13, 1, v15\nv_lshrrev_b32 v14, 1, v15")
    S(f"v_lshlrev_b32 v{V_LA}, 4, v0\nv_lshl_add_u32 v{V_LA}, v13, 12, v{V_LA}")
    S("v_bfe_u32 v16, v0, 2, 3\nv_lshrrev_b32 v17, 1, v16\nv_lshrrev_b32 v18, 5, v0\nv_and_b32 v19, 3, v0")
    S("v_lshlrev_b32 v20, 10, v18\nv_lshl_add_u32 v20, v16, 7, v20\nv_lshl_add_u32 v20, v17, 5, v20\nv_lshl_add_u32 v20, v19, 3, v20")
    S("v_lshl_add_u32 v20, v14, 12, v20\nv_add_u32 v20, 8192, v20")
    for nbl in range(4):
        S(f"v_xor_b32 v{V_LW+nbl}, {32*nbl}, v20")
    S(f"v_lshlrev_b32 v{V_EX}, 4, v0\nv_lshl_add_u32 v{V_EX}, v15, 13, v{V_EX}")
    S("v_and_b32 v16, 15, v0\nv_lshl_add_u32 v16, v13, 6, v16\nv_lshlrev_b32 v16, 11, v16")
    S("v_bfe_u32 v17, v0, 4, 1\nv_lshl_add_u32 v16, v17, 5, v16")
    S(f"v_lshrrev_b32 v17, 5, v0\nv_lshl_add_u32 v16, v17, 4, v16")
    S(f"v_lshl_add_u32 v{V_XO}, v14, 7, v16")
    S.raw("s_waitcnt lgkmcnt(0)")
    S("s_lshl_b32 s50, s45, 8")
    S("s_lshl_b32 s52, s42, 3\ns_add_u32 s52, s52, s45")
    S("s_lshl_b32 s56, s52, 2\ns_add_u32 s56, s56, s40")
    S(f"s_lshl_b32 s52, s52, 15\ns_add_u32 s52, s52, {WS_EX}")
    S("s_lshl_b32 s53, s41, 22\ns_add_u32 s54, s52, s53")
    S("s_xor_b32 s53, s53, 0x400000\ns_add_u32 s55, s52, s53")
    S("s_add_u32 s16, s60, s54\ns_addc_u32 s17, s61, 0\ns_mov_b32 s18, 0x8000\ns_mov_b32 s19, 0x20000")
    S("s_add_u32 s20, s60, s55\ns_addc_u32 s21, s61, 0\ns_mov_b32 s22, 0x8000\ns_mov_b32 s23, 0x20000")
    S("s_lshl_b32 s52, s42, 18\ns_add_u32 s52, s52, s50")
    S("s_sub_u32 s53, 0x400000, s52")
    S("s_add_u32 s24, s66, s52\ns_addc_u32 s25, s67, 0\ns_mov_b32 s26, s53\ns_mov_b32 s27, 0x20000")
    S("s_add_u32 s28, s68, s52\ns_addc_u32 s29, s69, 0\ns_mov_b32 s30, s53\ns_mov_b32 s31, 0x20000")
    S(f"s_add_u32 s32, s60, {WS_FL}\ns_addc_u32 s33, s61, 0\ns_mov_b32 s34, 0x10000\ns_mov_b32 s35, 0x20000")
    S("s_lshl_b32 s57, s56, 7")
    S("v_mov_b32 v13, 0")
    S("s_mov_b32 s58, 0")
    S("s_mov_b32 s72, 0\ns_mov_b32 s73, 0x8000\ns_mov_b32 s74, 0x10000\ns_mov_b32 s75, 0x18000")
    S("s_mov_b32 s76, 0\ns_mov_b32 s77, 4096")
    for i in range(64): S(f"v_mov_b32 v{ACC+i}, 0")
    S("s_lshr_b32 s51, s51, 1")
    S("s_barrier")
    stamp(S, 1)
    for i in range(4):
        d = TF + 4 * i
        S(f"ds_read_b128 v[{d}:{d+3}], v{V_LA} offset:{1024*i}")
        d = WF + 4 * i
        S(f"ds_read_b64_tr_b16 v[{d}:{d+1}], v{V_LW+i}")
        S(f"ds_read_b64_tr_b16 v[{d+2}:{d+3}], v{V_LW+i} offset:2048")
    S(f"s_mov_b32 s50, {SLOT}")
    S(f"v_add_u32 v{V_A}, s50, v{V_LA}")
    for i in range(4): S(f"v_add_u32 v{V_W+i}, s50, v{V_LW+i}")
    for pr in range(2):
        for mb in range(4):
            d = XR + 16 * pr + 4 * mb
            S(f"buffer_load_dwordx4 v[{d}:{d+3}], v{V_XO}, s[24:27], s{72+mb} offen offset:{64*pr}")
    n0 = len(S.ins)
    S.raw(".p2align 6"); S.raw(f"L_{name}_g:")
    comp_step(S, 0, True)
    comp_step(S, 1, BI == 1)
    S2 = Stream(); S2.set_state(S.state())
    comp_step(S2, 0, True); comp_step(S2, 1, BI == 1)
    errs = check_hazards(S.ins[n0:] + S2.ins, "k3loop"); assert not errs, "\n".join(errs[:10])
    S(f"s_sub_u32 s51, s51, 1\ns_cmp_gt_u32 s51, {PEEK}")
    S(f"s_cbranch_scc1 L_{name}_g")
    S(f"s_cmp_lg_u32 s51, {PEEK}")
    S(f"s_cbranch_scc1 L_{name}_np")
    S("buffer_load_dword v14, v13, s[32:35], s57 offen sc0 sc1")
    S(f"s_branch L_{name}_g")
    S.raw(f"L_{name}_np:")
    S(f"s_cmp_lg_u32 s51, {PCHK}")
    S(f"s_cbranch_scc1 L_{name}_nc")
    S.wait(vm=0)
    S("v_readfirstlane_b32 s58, v14")
    S("s_nop 1")
    S("s_cmp_eq_u32 s58, 0")
    S(f"s_cbranch_scc1 L_{name}_g")
    for i in range(8):
        S(f"buffer_load_dwordx4 v[{PN+4*i}:{PN+4*i+3}], v{V_EX}, s[20:23], s{76+i//4} offen offset:{1024*(i%4)} sc0 sc1")
    S(f"s_branch L_{name}_g")
    S.raw(f"L_{name}_nc:")
    S("s_cmp_lg_u32 s51, 0")
    S(f"s_cbranch_scc1 L_{name}_g")
    S.wait(lg=0)
    stamp(S, 2)
    S("s_mov_b32 s87, 0")
    S("s_cmp_lg_u32 s58, 0")
    S(f"s_cbranch_scc1 L_{name}_nopeek")
    S("buffer_load_dword v14, v13, s[32:35], s57 offen sc0 sc1")
    S.raw(f"L_{name}_nopeek:")
    S("s_mov_b32 s59, 0xffff0000")
    S("s_nop 4")
    S("s_cmp_eq_u32 s41, 0")
    S(f"s_cbranch_scc1 L_{name}_pack")
    T = 80
    for i in range(32): S(f"v_cvt_pk_bf16_f32 v{T+i}, v{ACC+2*i}, v{ACC+2*i+1}")
    for i in range(32):
        S(f"v_lshlrev_b32 v{ACC+2*i}, 16, v{T+i}")
        S(f"v_and_b32 v{ACC+2*i+1}, s59, v{T+i}")
    for i in range(64): S(f"v_mul_f32 v{T+i}, 0xbfb8aa3b, v{ACC+i}")
    for i in range(64): S(f"v_exp_f32 v{T+i}, v{T+i}")
    for i in range(64): S(f"v_add_f32 v{T+i}, 1.0, v{T+i}")
    for i in range(64): S(f"v_rcp_f32 v{T+i}, v{T+i}")
    for i in range(64): S(f"v_mul_f32 v{ACC+i}, v{ACC+i}, v{T+i}")
    S.raw(f"L_{name}_pack:")
    M = 80
    for i in range(32): S(f"v_cvt_pk_bf16_f32 v{M+i}, v{ACC+2*i}, v{ACC+2*i+1}")
    S("s_cmp_lg_u32 s58, 0")
    S(f"s_cbranch_scc1 L_{name}_final2")
    S.wait(vm=0)
    S("v_readfirstlane_b32 s36, v14")
    S("s_nop 1")
    S("s_cmp_lg_u32 s36, 0")
    S(f"s_cbranch_scc1 L_{name}_final")
    for i in range(8):
        S(f"buffer_store_dwordx4 v[{M+4*i}:{M+4*i+3}], v{V_EX}, s[16:19], s{76+i//4} offen offset:{1024*(i%4)} sc0 sc1")
    S("v_mov_b32 v14, 1")
    S.wait(vm=0)
    S("s_mov_b64 s[38:39], exec\ns_mov_b64 exec, 1")
    S("buffer_atomic_add v14, v13, s[32:35], s57 offen sc0 sc1")
    S.wait(vm=0)
    S("s_mov_b64 exec, s[38:39]")
    S("v_readfirstlane_b32 s36, v14")
    S("s_nop 1")
    S("s_cmp_eq_u32 s36, 0")
    S(f"s_cbranch_scc1 L_{name}_end2")
    S.raw(f"L_{name}_final:")
    S("s_mov_b32 s87, 1")
    Pn = PN; X = XR
    for i in range(8):
        S(f"buffer_load_dwordx4 v[{Pn+4*i}:{Pn+4*i+3}], v{V_EX}, s[20:23], s{76+i//4} offen offset:{1024*(i%4)} sc0 sc1")
    S.raw(f"L_{name}_final2:")
    A = 16; B = 112
    for i in range(32):
        S(f"v_lshlrev_b32 v{A+2*i}, 16, v{M+i}")
        S(f"v_and_b32 v{A+2*i+1}, s59, v{M+i}")
    S.wait(vm=0)
    for i in range(32):
        S(f"v_lshlrev_b32 v{B+i}, 16, v{Pn+i}")
        S(f"v_and_b32 v{Pn+i}, s59, v{Pn+i}")
    for i in range(32):
        S(f"v_mul_f32 v{A+2*i}, v{A+2*i}, v{B+i}")
        S(f"v_mul_f32 v{A+2*i+1}, v{A+2*i+1}, v{Pn+i}")
    for pr in range(2):
        for mb in range(4):
            for sub in range(2):
                for h in range(2):
                    src = A + 16 * (2 * pr + sub) + 4 * mb + 2 * h
                    S(f"v_cvt_pk_bf16_f32 v{M + 16*pr + 4*mb + 2*sub + h}, v{src}, v{src+1}")
    S("s_nop 1")
    for k in range(8):
        S(f"v_permlane16_swap_b32 v{M+4*k}, v{M+4*k+2}")
        S(f"v_permlane16_swap_b32 v{M+4*k+1}, v{M+4*k+3}")
    for i in range(32):
        S(f"v_lshlrev_b32 v{A+2*i}, 16, v{M+i}")
        S(f"v_and_b32 v{A+2*i+1}, s59, v{M+i}")
    for i in range(32):
        S(f"v_lshlrev_b32 v{B+i}, 16, v{X+i}")
        S(f"v_and_b32 v{X+i}, s59, v{X+i}")
    for i in range(32):
        S(f"v_add_f32 v{A+2*i}, v{A+2*i}, v{B+i}")
        S(f"v_add_f32 v{A+2*i+1}, v{A+2*i+1}, v{X+i}")
    for i in range(32): S(f"v_cvt_pk_bf16_f32 v{M+i}, v{A+2*i}, v{A+2*i+1}")
    for pr in range(2):
        for mb in range(4):
            d = M + 16 * pr + 4 * mb
            S(f"buffer_store_dwordx4 v[{d}:{d+3}], v{V_XO}, s[28:31], s{72+mb} offen offset:{64*pr}")
    S.raw(f"L_{name}_end2:")
    if STAMPS: S.wait(vm=0)
    stamp(S, 4)
    stamp_dump(S, 2, 5)
    S.raw(f"L_{name}_end:")
    S("s_endpgm")
    errs = check_hazards(S.ins, name)
    assert not errs, "\n".join(errs[:20])
    return S.text(), kernel_desc(name, 256, 256, 102), f"; @launch kernel={name} grid=(256,1,1) block=(512,1,1) lds={NSL*SLOT}"
```

```python
import os
WS_BASE = int(os.environ.get('WS_BASE', 0)) * 1024 * 1024
WS_XN = WS_BASE
WS_H = WS_BASE + 4 * 1024 * 1024
WS_O = WS_BASE + 20 * 1024 * 1024
WS_EX = WS_BASE + 36 * 1024 * 1024
H_BYTES = 2048 * 3584 * 2
O_BYTES = 2048 * 4096 * 2
KA_X, KA_K, KA_V, KA_WQ, KA_WO, KA_BX, KA_WG, KA_WU, KA_WD, KA_OUT, KA_DBG, KA_WS = [8 * i for i in range(12)]
WS_FL = WS_BASE + 44 * 1024 * 1024
```

```python
from asmlib import *
from layout import *

def gen_k1(name="ln_kernel"):
    S = Stream()
    S.raw(kernel_head(name))
    S("s_cmp_ge_u32 s2, 256")
    S(f"s_cbranch_scc1 L_{name}_end")
    S(f"s_load_dwordx2 s[4:5], s[0:1], {KA_X}")
    S(f"s_load_dwordx2 s[6:7], s[0:1], {KA_WS}")
    stamp(S, 0)
    S("v_and_b32 v1, 7, v0")
    S("v_bfe_u32 v2, v0, 3, 3")
    S("v_lshrrev_b32 v3, 6, v0")
    S("v_lshlrev_b32 v4, 11, v1")
    S("v_lshl_add_u32 v4, v2, 4, v4")
    S("v_lshl_add_u32 v4, v3, 9, v4")
    S("s_lshl_b32 s3, s2, 14")
    S.raw("s_waitcnt lgkmcnt(0)")
    S("s_mov_b32 s8, s4\ns_mov_b32 s9, s5\ns_mov_b32 s10, 0x400000\ns_mov_b32 s11, 0x20000")
    S(f"s_add_u32 s12, s6, {WS_XN}\ns_addc_u32 s13, s7, 0\ns_mov_b32 s14, 0x400000\ns_mov_b32 s15, 0x20000")
    for i in range(4):
        S(f"buffer_load_dwordx4 v[{8+4*i}:{11+4*i}], v4, s[8:11], s3 offen offset:{128*i} nt")
    S(f"s_add_u32 s24, s6, {WS_FL}\ns_addc_u32 s25, s7, 0\ns_mov_b32 s26, 0x10000\ns_mov_b32 s27, 0x20000")
    S("s_lshl_b32 s21, s2, 8")
    S("v_lshlrev_b32 v5, 2, v0\nv_mov_b32 v6, 0")
    S("v_cmp_gt_u32 vcc, 64, v0")
    S("s_nop 1")
    S("s_and_saveexec_b64 s[22:23], vcc")
    S("buffer_store_dword v6, v5, s[24:27], s21 offen")
    S("s_mov_b64 exec, s[22:23]")
    S("v_lshrrev_b32 v5, 2, v2")
    S("v_lshl_add_u32 v5, v3, 3, v5")
    S("v_lshlrev_b32 v5, 14, v5")
    S("v_and_b32 v6, 3, v2")
    S("v_lshl_add_u32 v5, v6, 8, v5")
    S("v_lshl_add_u32 v5, v1, 4, v5")
    S("s_lshr_b32 s16, s2, 5\ns_lshl_b32 s16, s16, 19")
    S("s_bfe_u32 s17, s2, 0x40001\ns_lshl_b32 s17, s17, 10\ns_add_u32 s16, s16, s17")
    S("s_and_b32 s17, s2, 1\ns_lshl_b32 s17, s17, 7\ns_add_u32 s16, s16, s17")
    S("s_add_u32 s17, s16, 32768\ns_add_u32 s18, s16, 65536\ns_add_u32 s19, s16, 98304")
    S("v_bfe_u32 v6, v0, 4, 2")
    S("v_lshl_add_u32 v6, v3, 2, v6")
    S("v_lshlrev_b32 v6, 2, v6")
    S("v_lshlrev_b32 v7, 6, v1")
    S("v_add_u32 v6, v6, v7")
    S("s_mov_b32 s20, 0xffff0000")
    for i in range(16):
        S(f"v_lshlrev_b32 v{32+2*i}, 16, v{8+i}")
        S(f"v_and_b32 v{33+2*i}, s20, v{8+i}")
    def reduce(src_regs, off):
        cur = list(src_regs)
        t = 64
        nxt = []
        for i in range(0, 32, 2):
            S(f"v_add_f32 v{t+i//2}, v{cur[i]}, v{cur[i+1]}"); nxt.append(t + i // 2)
        cur = nxt
        while len(cur) > 1:
            nxt = []
            for i in range(0, len(cur), 2):
                S(f"v_add_f32 v{cur[i]}, v{cur[i]}, v{cur[i+1]}"); nxt.append(cur[i])
            cur = nxt
        S("s_nop 1")
        S(f"v_add_f32_dpp v65, v64, v64 row_ror:8 row_mask:0xf bank_mask:0xf")
        S(f"ds_write_b32 v6, v65 offset:{off}")
        S.wait(lg=0)
        S("s_barrier")
        for i in range(4):
            S(f"ds_read_b128 v[{64+4*i}:{67+4*i}], v7 offset:{off+16*i}")
        cur = list(range(64, 80))
        while len(cur) > 1:
            nxt = []
            for i in range(0, len(cur), 2):
                S(f"v_add_f32 v{cur[i]}, v{cur[i]}, v{cur[i+1]}"); nxt.append(cur[i])
            cur = nxt
        S("v_mul_f32 v80, 0x3a800000, v64")
    reduce(range(32, 64), 0)
    S("v_mov_b32 v81, v80")
    for i in range(32):
        S(f"v_sub_f32 v{96+i}, v{32+i}, v81")
    for i in range(32):
        S(f"v_mul_f32 v{96+i}, v{96+i}, v{96+i}")
    reduce(range(96, 128), 512)
    S("v_cvt_pk_bf16_f32 v82, v81, v80")
    S("v_lshlrev_b32 v83, 16, v82")
    S("v_and_b32 v84, s20, v82")
    S("v_add_f32 v84, 0x3727c5ac, v84")
    S("v_cvt_pk_bf16_f32 v84, v84, v84")
    S("v_and_b32 v84, s20, v84")
    S("v_sqrt_f32 v84, v84")
    S("s_nop 0")
    S("v_cvt_pk_bf16_f32 v84, v84, v84")
    S("v_and_b32 v84, s20, v84")
    S("v_rcp_f32 v85, v84")
    for i in range(32):
        S(f"v_sub_f32 v{32+i}, v{32+i}, v83")
    for i in range(16):
        S(f"v_cvt_pk_bf16_f32 v{8+i}, v{32+2*i}, v{33+2*i}")
    for i in range(16):
        S(f"v_lshlrev_b32 v{32+2*i}, 16, v{8+i}")
        S(f"v_and_b32 v{33+2*i}, s20, v{8+i}")
    for i in range(32):
        S(f"v_mul_f32 v{32+i}, v{32+i}, v85")
    for i in range(16):
        S(f"v_cvt_pk_bf16_f32 v{8+i}, v{32+2*i}, v{33+2*i}")
        if i % 4 == 3:
            S(f"buffer_store_dwordx4 v[{8+i-3}:{8+i}], v5, s[12:15], s{16+i//4} offen")
    if STAMPS:
        S.wait(vm=0)
        S("v_readfirstlane_b32 s40, v3")
    stamp(S, 1)
    stamp_dump(S, 0, 2, ws="s[6:7]", vt=120)
    S.raw(f"L_{name}_end:")
    S("s_endpgm")
    errs = check_hazards(S.ins, name)
    assert not errs, "\n".join(errs)
    return S.text(), kernel_desc(name, 128, 128, 102 if STAMPS else 32), f"; @launch kernel={name} grid=(256,1,1) block=(256,1,1) lds=1024"
```

```python
from asmlib import *
from layout import *
import math

LA = 6
RA = 8
NG = 22
SLOT = 24576
KRING = 96 * 1024
VRING = 0

GU0 = 16
QACC = 0
BR = 128
AR = 192
V_TOK = 1; V_Q = 2; V_X = 3; V_Y = 4; V_H = 5
V_AD = 240
A_S = 16
A_P = 80
A_E = 112
A_NM = 128
A_ONE = 144
A_K = 148
A_V = 180
A_KAD = 212
A_VAD = 216
A_TMP = 224
V_KV = 6
V_O = 12
A_O = 0
A_Q = 128
A_L = 192

def acc(nb, mb):
    if nb < 8:
        r = QACC + 16 * nb + 4 * mb; return f"a[{r}:{r+3}]"
    k = nb - 8; b = k // 2; u = k % 2
    r = GU0 + 32 * b + 16 * u + 4 * mb; return f"v[{r}:{r+3}]"

def a_reads(stage, nb):
    slot = stage % 4
    st = 1 if slot >= 2 else 0
    base = (slot % 2) * SLOT
    ring = (NG * stage + nb) % RA
    d = AR + 4 * ring
    if nb < 8:
        half = nb >> 2; p64 = (nb >> 1) & 1; T = nb & 1
        ad = V_AD + 8 + 2 * st + p64
        off = base + half * 4096 + 8 * T
    else:
        k = nb - 8; b = k // 2; u = k % 2
        mh = 2 + 2 * u + (b >> 2)
        ad = V_AD + 4 * st + (b & 3)
        off = base + mh * 4096
    return [f"ds_read_b64_tr_b16 a[{d}:{d+1}], v{ad} offset:{off}",
            f"ds_read_b64_tr_b16 a[{d+2}:{d+3}], v{ad} offset:{off+512}"]

def gemm_load_op(L, q):
    slot = L % 4
    if q < 6:
        mat = q // 2; half = q % 2
        dst = slot * SLOT + q * 4096
        if mat == 0:
            t = f"s_add_u32 m0, s46, {dst - 128*half if dst - 128*half >= 0 else 0}\n"
            assert dst - 128 * half >= 0
            t += "s_nop 0\n"
            t += f"buffer_load_dwordx4 v{V_Q}, s[12:15], s44 offen offset:{128*half} lds"
            if half == 1: t += "\ns_add_u32 s44, s44, 0x40000"
        else:
            srd = "s[16:19]" if mat == 1 else "s[20:23]"
            t = f"s_add_u32 m0, s46, {dst}\ns_nop 0\n"
            t += f"buffer_load_dwordx4 v{V_X if half == 0 else V_Y}, {srd}, s45 offen lds"
            if q == 5: t += f"\ns_add_u32 s45, s45, {32*7168}"
        return t
    mb = q - 6
    d = BR + 16 * slot + 4 * mb
    t = f"buffer_load_dwordx4 a[{d}:{d+3}], v{V_TOK}, s[8:11], s43 offen offset:{1024*mb}"
    if mb == 3: t += "\ns_add_u32 s43, s43, 0x4000"
    return t

def kv_dma(which, slot, i, soff="s56"):
    t = ""
    if which == "K":
        if i == 0: t += f"s_add_u32 m0, s57, {KRING + slot*16384}\ns_nop 0\n"
        t += f"buffer_load_dwordx4 v{V_KV+i}, s[24:27], {soff} offen offset:{1024*i} lds"
    else:
        if i == 0: t += f"s_add_u32 m0, s57, {VRING + slot*16384}\ns_nop 0\n"
        t += f"buffer_load_dwordx4 v{V_KV+4+(i&1)}, s[28:31], {soff} offen offset:{1024*i} lds"
    return t

def gemm_stages(S, stages, last=31, tail_ops=None, first=False):
    tail_ops = list(tail_ops or [])
    for s in stages:
        for nb in range(NG):
            ring = (NG * s + nb) % RA
            a = AR + 4 * ring
            mf = []
            for mb in range(4):
                b = BR + 16 * (s % 4) + 4 * mb
                c = acc(nb, mb)
                mf.append(f"v_mfma_f32_16x16x32_bf16 {c}, a[{a}:{a+3}], a[{b}:{b+3}], {c}")
            fill = []
            ab = NG * s + nb + LA
            s2, nb2 = divmod(ab, NG)
            if s2 <= last:
                r = a_reads(s2, nb2)
                fill.append((0, r[0])); fill.append((1, r[1]))
            for sp in (s, s - 1):
                q = NG * s + nb - (NG * sp + NG - LA)
                if 0 <= q < 10:
                    if sp + 3 <= last:
                        fill.append((2, gemm_load_op(sp + 3, q)))
                    elif tail_ops:
                        fill.append((2, tail_ops.pop(0)))
            weave(S, mf, fill)
            if nb == NG - LA - 1 and s + 1 <= last:
                S.bar_hook(s)
    assert not tail_ops

def att_half(S, t, do_qk=True, do_pv=True, do_sm=True, k_reload=True, v_reload=True, dma=None, pre=None, cfirst=None):
    p = t & 1
    T = t >> 1
    sN = A_S + 32 * (p ^ 1); sC = A_S + 32 * p
    pW = A_P + 16 * p; pR = A_P + 16 * (p ^ 1)
    mf = []; lds = []
    kslot = ((t + 2) >> 1) % 4; khalf = (t + 2) & 1
    vslot = T % 4; vhalf = p
    def kread(kb, kk):
        d = A_K + 16 * kb + 4 * kk
        return f"ds_read_b128 v[{d}:{d+3}], v{A_KAD+kk} offset:{kslot*16384 + khalf*8192 + kb*4096}"
    def vread(db, n):
        d = A_V + 4 * db + 2 * n
        return f"ds_read_b64_tr_b16 v[{d}:{d+1}], v{A_VAD+db} offset:{vslot*16384 + vhalf*8192 + n*4096}"
    for kb in range(2):
        for kk in range(4):
            if do_qk:
                for qb in range(4):
                    d = sN + 16 * kb + 4 * qb
                    if kk == 0:
                        c = cfirst if cfirst is not None else f"v[{A_NM+4*qb}:{A_NM+4*qb+3}]"
                    else:
                        c = f"v[{d}:{d+3}]"
                    ka = A_K + 16 * kb + 4 * kk; qa = A_Q + 16 * qb + 4 * kk
                    mf.append(f"v_mfma_f32_16x16x32_bf16 v[{d}:{d+3}], v[{ka}:{ka+3}], a[{qa}:{qa+3}], {c}")
            if k_reload: lds.append((len(mf) - 1, kread(kb, kk)))
    for db in range(8):
        if do_pv:
            for qb in range(4):
                o = A_O + 32 * qb + 4 * db; va = A_V + 4 * db; pa = pR + 4 * qb
                mf.append(f"v_mfma_f32_16x16x32_bf16 a[{o}:{o+3}], v[{va}:{va+3}], v[{pa}:{pa+3}], a[{o}:{o+3}]")
            if db % 2 == 1:
                qb = db // 2
                l = A_L + 4 * qb; pa = pR + 4 * qb
                mf.append(f"v_mfma_f32_16x16x32_bf16 a[{l}:{l+3}], v[{A_ONE}:{A_ONE+3}], v[{pa}:{pa+3}], a[{l}:{l+3}]")
        if v_reload:
            e = len(mf) - 1 - (1 if (do_pv and db % 2 == 1) else 0)
            lds.append((e, vread(db, 0))); lds.append((e, vread(db, 1)))
    valu = []
    if do_sm:
        seq = []
        for qb in range(4):
            for kb in range(2):
                for r in range(4):
                    seq.append((qb, kb, r))
        pend = []
        for i, (qb, kb, r) in enumerate(seq):
            valu.append((8, f"v_exp_f32 v{A_E + i % 16}, v{sC + 16*kb + 4*qb + r}"))
            if pend and i >= pend[0][0] + 2:
                valu.append((4, pend.pop(0)[1]))
            if r % 2 == 1:
                pend.append((i, f"v_cvt_pk_bf16_f32 v{pW + 4*qb + 2*kb + r//2}, v{A_E + (i-1) % 16}, v{A_E + i % 16}"))
        for _, x in pend: valu.append((4, x))
    dm = list(dma or [])
    n = len(mf)
    if pre: S(pre)
    if n == 0:
        for _, x in lds: S(x)
        last_trans = False
        for c, x in valu:
            if last_trans and c == 4: S("s_nop 0")
            S(x); last_trans = (c == 8)
        for x in dm: S(x)
        return
    tot_v = sum(c for c, _ in valu)
    done_v = 0
    vi = 0; li = 0; di = 0
    dpos = [int((k + 0.5) * n / max(1, len(dm))) for k in range(len(dm))]
    for g in range(n):
        S(mf[g])
        cap = 8
        lastgap = (g == n - 1)
        prev_trans = False
        while True:
            want_v = vi < len(valu) and (done_v < tot_v * (g + 1) / n or lastgap)
            can_l = li < len(lds) and lds[li][0] <= g
            can_d = di < len(dm) and dpos[di] <= g
            if can_d and (cap >= 8 or lastgap):
                S(dm[di]); di += 1; cap -= 8; prev_trans = False
            elif want_v and (valu[vi][0] <= cap or lastgap) and not (can_l and lds[li][0] + 3 <= g and cap >= 4):
                if prev_trans and valu[vi][0] == 4: S("s_nop 0")
                prev_trans = valu[vi][0] == 8
                S(valu[vi][1]); done_v += valu[vi][0]; cap -= valu[vi][0]; vi += 1
            elif can_l and (cap >= 4 or lastgap):
                S(lds[li][1]); li += 1; cap -= 4; prev_trans = False
            else:
                break
    assert vi == len(valu) and li == len(lds) and di == len(dm)

def att_stage(S, T, kind="mid"):
    kd = [kv_dma("K", (T + 3) % 4, i) for i in range(4)]
    vd = [kv_dma("V", (T + 2) % 4, i) for i in range(4)]
    vd[3] += "\ns_add_u32 s56, s56, 0x4000"
    if kind == "first":
        att_half(S, 2 * T, do_pv=False, dma=kd)
        att_half(S, 2 * T + 1, dma=vd)
    elif kind == "last":
        S.wait(vm=0); S("s_barrier")
        att_half(S, 2 * T, k_reload=False)
        att_half(S, 2 * T + 1, do_qk=False, k_reload=False)
        att_half(S, 2 * T + 2, do_qk=False, do_sm=False, k_reload=False, v_reload=False)
    else:
        S.wait(vm=8); S("s_barrier")
        att_half(S, 2 * T, dma=kd)
        att_half(S, 2 * T + 1, dma=vd)

def crosslane_max(S, regs, tmp):
    for r in regs:
        S(f"v_mov_b32 v{tmp}, v{r}")
        S("s_nop 1")
        S(f"v_permlane16_swap_b32 v{tmp}, v{r}")
        S("s_nop 1")
        S(f"v_max_f32 v{r}, v{r}, v{tmp}")
        S(f"v_mov_b32 v{tmp}, v{r}")
        S("s_nop 1")
        S(f"v_permlane32_swap_b32 v{tmp}, v{r}")
        S("s_nop 1")
        S(f"v_max_f32 v{r}, v{r}, v{tmp}")

def gen_k2(name="main_kernel"):
    S = Stream()
    S.raw(kernel_head(name))
    S("s_cmp_ge_u32 s2, 256")
    S(f"s_cbranch_scc1 L_{name}_end")
    S(f"s_load_dwordx2 s[60:61], s[0:1], {KA_WS}")
    S(f"s_load_dwordx2 s[62:63], s[0:1], {KA_WQ}")
    S(f"s_load_dwordx4 s[64:67], s[0:1], {KA_WG}")
    S(f"s_load_dwordx4 s[68:71], s[0:1], {KA_K}")
    stamp(S, 0)
    S("v_lshrrev_b32 v13, 6, v0")
    S("v_and_b32 v0, 63, v0")
    S("v_readfirstlane_b32 s40, v13")
    S("s_and_b32 s41, s2, 7\ns_lshl_b32 s41, s41, 2\ns_bfe_u32 s42, s2, 0x20003\ns_add_u32 s41, s41, s42")
    S("s_lshr_b32 s42, s2, 5")
    S("s_lshl_b32 s46, s40, 10")
    S("s_lshl_b32 s57, s40, 12")
    S("v_lshrrev_b32 v14, 3, v0")
    S("v_and_b32 v15, 7, v0")
    S("v_bfe_u32 v240, v14, 1, 1")
    S("v_and_b32 v241, 1, v13")
    S("v_lshl_add_u32 v240, v241, 1, v240")
    S("v_lshlrev_b32 v240, 1, v240")
    S("v_xor_b32 v240, v240, v15")
    S("v_lshl_add_u32 v241, v13, 3, v14")
    S(f"v_lshlrev_b32 v{V_Q}, 13, v241")
    S(f"v_lshl_add_u32 v{V_Q}, v240, 4, v{V_Q}")
    S("s_and_b32 s47, s41, 3\ns_lshl_b32 s58, s47, 1")
    S("v_mul_u32_u24 v242, 7168, v241")
    S("v_add_u32 v243, s58, v240")
    S(f"v_lshl_add_u32 v{V_X}, v243, 4, v242")
    S("v_add_u32 v243, 8, v243")
    S("v_subrev_u32 v244, 14, v243")
    S("v_cmp_le_u32 vcc, 14, v243")
    S("s_nop 1")
    S("v_cndmask_b32 v243, v243, v244, vcc")
    S(f"v_lshl_add_u32 v{V_Y}, v243, 4, v242")
    S("v_bfrev_b32 v244, 1")
    S("v_cmp_le_u32 vcc, 6, v240")
    S("s_nop 1")
    S(f"v_cndmask_b32 v{V_Y}, v{V_Y}, v244, vcc")
    S(f"v_lshlrev_b32 v{V_TOK}, 4, v0")
    S(f"v_lshl_add_u32 v{V_TOK}, v13, 12, v{V_TOK}")
    S.raw("s_waitcnt lgkmcnt(0)")
    S(f"s_lshl_b32 s59, s42, 19\ns_add_u32 s59, s59, {WS_XN}")
    S(f"s_add_u32 s8, s60, s59\ns_addc_u32 s9, s61, 0\ns_mov_b32 s10, 0x80000\ns_mov_b32 s11, 0x20000")
    S("s_lshl_b32 s59, s41, 8")
    S("s_add_u32 s12, s62, s59\ns_addc_u32 s13, s63, 0\ns_sub_u32 s14, 0x800000, s59\ns_mov_b32 s15, 0x20000")
    S("s_mul_i32 s59, s41, 224")
    S(f"s_add_u32 s16, s64, s59\ns_addc_u32 s17, s65, 0\ns_sub_u32 s18, {1024*7168}, s59\ns_mov_b32 s19, 0x20000")
    S(f"s_add_u32 s20, s66, s59\ns_addc_u32 s21, s67, 0\ns_mov_b32 s22, s18\ns_mov_b32 s23, 0x20000")
    S("s_mov_b32 s43, 0\ns_mov_b32 s44, 0\ns_mov_b32 s45, 0")
    for L in range(2):
        for q in range(10): S(gemm_load_op(L, q))
    for q in range(LA): S(gemm_load_op(2, q))
    S("s_lshl_b32 s59, s41, 19")
    S("s_add_u32 s24, s68, s59\ns_addc_u32 s25, s69, 0\ns_mov_b32 s26, 0x80000\ns_mov_b32 s27, 0x20000")
    S("s_add_u32 s28, s70, s59\ns_addc_u32 s29, s71, 0\ns_mov_b32 s30, 0x80000\ns_mov_b32 s31, 0x20000")
    S("s_lshr_b32 s59, s40, 1\ns_lshl_b32 s55, s42, 1\ns_add_u32 s59, s59, s55")
    S(f"s_mul_i32 s55, s59, {112*8192}\ns_add_u32 s55, s55, {WS_H}")
    S(f"s_add_u32 s32, s60, s55\ns_addc_u32 s33, s61, 0\ns_mov_b32 s34, {112*8192}\ns_mov_b32 s35, 0x20000")
    S(f"s_lshl_b32 s55, s59, 20\ns_add_u32 s55, s55, {WS_O}\ns_lshl_b32 s59, s41, 15\ns_add_u32 s55, s55, s59")
    S(f"s_add_u32 s36, s60, s55\ns_addc_u32 s37, s61, 0\ns_mov_b32 s38, 0x8000\ns_mov_b32 s39, 0x20000")
    S("s_mul_i32 s59, s41, 7")
    for b in range(7):
        S(f"s_add_u32 s55, s47, {b}\ns_sub_u32 s72, s55, 7\ns_cmp_ge_u32 s55, 7\ns_cselect_b32 s55, s72, s55\ns_add_u32 s55, s55, s59")
        S(f"s_lshr_b32 s72, s55, 1\ns_lshl_b32 s72, s72, 13\ns_and_b32 s55, s55, 1\ns_lshl_b32 s55, s55, 3\ns_add_u32 s{48+b}, s72, s55")
    S("v_and_b32 v241, 1, v13")
    S(f"v_lshlrev_b32 v{V_H}, 4, v0")
    S(f"v_lshl_add_u32 v{V_H}, v241, 12, v{V_H}")
    S("v_lshrrev_b32 v242, 4, v0\nv_and_b32 v243, 15, v0")
    S("v_lshl_add_u32 v244, v13, 4, v242")
    S("v_lshlrev_b32 v244, 8, v244")
    S("v_xor_b32 v245, v243, v242")
    S("v_lshl_add_u32 v245, v245, 4, v244")
    for i in range(4):
        S(f"v_xor_b32 v{V_KV+i}, {64*i}, v245")
    S("v_lshlrev_b32 v245, 1, v242")
    S("v_xor_b32 v245, v243, v245")
    S(f"v_lshl_add_u32 v{V_KV+4}, v245, 4, v244")
    S(f"v_xor_b32 v{V_KV+5}, 128, v{V_KV+4}")
    S("v_bfe_u32 v243, v0, 2, 2\nv_and_b32 v244, 3, v0")
    S("v_lshrrev_b32 v245, 1, v243\nv_and_b32 v246, 1, v242\nv_lshl_add_u32 v245, v246, 1, v245")
    S("v_lshlrev_b32 v246, 10, v242\nv_lshl_add_u32 v246, v243, 7, v246")
    S("v_lshrrev_b32 v247, 1, v244\nv_xor_b32 v247, v247, v245\nv_lshl_add_u32 v247, v247, 5, v246")
    S("v_and_b32 v248, 1, v244\nv_lshl_add_u32 v252, v248, 4, v247")
    S("v_lshl_add_u32 v246, v244, 3, v246\nv_lshl_add_u32 v253, v245, 5, v246")
    for nbl in range(4):
        S(f"v_xor_b32 v{V_AD+nbl}, {32*nbl}, v253")
        S(f"v_add_u32 v{V_AD+4+nbl}, {2*SLOT}, v{V_AD+nbl}")
    S(f"v_mov_b32 v{V_AD+8}, v252\nv_xor_b32 v{V_AD+9}, 64, v252")
    S(f"v_add_u32 v{V_AD+10}, {2*SLOT}, v{V_AD+8}\nv_add_u32 v{V_AD+11}, {2*SLOT}, v{V_AD+9}")
    for i in range(128): S(f"v_accvgpr_write_b32 a{QACC+i}, 0")
    for i in range(224): S(f"v_mov_b32 v{GU0+i}, 0")
    S.wait(vm=10 + LA)
    S("s_barrier")
    stamp(S, 1)
    for nb in range(LA):
        for x in a_reads(0, nb): S(x)
    def bar(s):
        S.wait(vm=10); S("s_barrier")
    S.bar_hook = bar
    S("s_mov_b32 s47, 7")
    n0 = len(S.ins)
    S.raw(".p2align 6")
    S.raw(f"L_{name}_g:")
    gemm_stages(S, [0, 1, 2, 3])
    body1 = [x.text for x in S.ins[n0:]]
    st = S.state()
    S2 = Stream(); S2.set_state(st); S2.bar_hook = lambda s: (S2.wait(vm=10), S2("s_barrier"))
    S2.raw(".p2align 6"); S2.raw(f"L_{name}_g:")
    gemm_stages(S2, [4, 5, 6, 7])
    assert body1 == [x.text for x in S2.ins], "gemm loop body not steady"
    errs = check_hazards(S.ins[n0:] + S2.ins, "gloop"); assert not errs, "\n".join(errs[:10])
    S("s_sub_u32 s47, s47, 1\ns_cmp_lg_u32 s47, 0")
    S(f"s_cbranch_scc1 L_{name}_g")
    tail = []
    for T in range(3):
        for i in range(4):
            tail.append(kv_dma("K", T, i, soff=f"s{73+T}"))
    S("s_mov_b32 s73, 0\ns_mov_b32 s74, 0x4000\ns_mov_b32 s75, 0x8000")
    def bar_tail(s):
        S.wait(vm={28: 10, 29: 10, 30: 10}[s]); S("s_barrier")
    S.bar_hook = bar_tail
    gemm_stages(S, [28, 29, 30, 31], tail_ops=tail)
    S("s_barrier")
    stamp(S, 2)
    S.raw(f"L_{name}_vpre:")
    for T in range(2):
        for i in range(4): S(kv_dma("V", T, i, soff=f"s{73+T}"))
    nst = 0
    S("s_mov_b32 s76, 0xc0135761")
    S("s_mov_b32 s77, 0xbdd2d3e8")
    S("v_mov_b32 v15, s76")
    T0 = 240
    for b in range(7):
        G = GU0 + 32 * b; U = G + 16
        for i in range(16): S(f"v_mul_f32 v{T0+i}, v{G+i}, v{G+i}")
        for i in range(16): S(f"v_fma_f32 v{T0+i}, v{T0+i}, s77, v15")
        for i in range(16): S(f"v_mul_f32 v{T0+i}, v{G+i}, v{T0+i}")
        for i in range(16): S(f"v_exp_f32 v{T0+i}, v{T0+i}")
        for i in range(16): S(f"v_mul_f32 v{U+i}, v{G+i}, v{U+i}")
        for i in range(16): S(f"v_add_f32 v{T0+i}, 1.0, v{T0+i}")
        for i in range(16): S(f"v_rcp_f32 v{T0+i}, v{T0+i}")
        for i in range(16): S(f"v_mul_f32 v{U+i}, v{U+i}, v{T0+i}")
        for i in range(8): S(f"v_cvt_pk_bf16_f32 v{G+i}, v{U+2*i}, v{U+2*i+1}")
        for mb in range(4):
            S(f"buffer_store_dwordx2 v[{G+2*mb}:{G+2*mb+1}], v{V_H}, s[32:35], s{48+b} offen offset:{1024*mb}")
            nst += 1
    qs = math.log2(math.e) / math.sqrt(128.0)
    import struct
    S(f"s_mov_b32 s76, {struct.unpack('<I', struct.pack('<f', qs))[0]:#x}")
    T0 = 240
    for nb in range(8):
        for i in range(16): S(f"v_accvgpr_read_b32 v{T0+i}, a{QACC+16*nb+i}")
        for i in range(16): S(f"v_mul_f32 v{T0+i}, s76, v{T0+i}")
        for i in range(8): S(f"v_cvt_pk_bf16_f32 v{T0+2*i}, v{T0+2*i}, v{T0+2*i+1}")
        for mb in range(4):
            for h in range(2):
                S(f"v_accvgpr_write_b32 a{A_Q + 16*mb + 4*(nb>>1) + 2*(nb&1) + h}, v{T0+4*mb+2*h}")
    S("s_mov_b32 s78, 0")
    S("v_and_b32 v240, 15, v0\nv_lshrrev_b32 v241, 4, v0")
    S("v_xor_b32 v242, v240, v241\nv_lshlrev_b32 v242, 4, v242\nv_lshl_add_u32 v242, v240, 8, v242")
    S(f"v_add_u32 v242, {KRING}, v242")
    for kk in range(4): S(f"v_xor_b32 v{A_KAD+kk}, {64*kk}, v242")
    S("v_lshrrev_b32 v242, 2, v0")
    S("v_and_b32 v243, 7, v242\nv_lshlrev_b32 v243, 5, v243\nv_lshl_add_u32 v243, v242, 8, v243")
    S("v_and_b32 v244, 3, v0\nv_lshl_add_u32 v243, v244, 3, v243")
    for db in range(8): S(f"v_xor_b32 v{A_VAD+db}, {32*db}, v243")
    for i in range(4): S(f"v_add_u32 v{V_KV+i}, 0x4000, v{V_KV+i}")
    S.raw(f"L_{name}_att:")
    S("s_mov_b32 s56, 0x8000")
    S("s_mov_b32 s79, 0x3f803f80")
    for i in range(4): S(f"v_mov_b32 v{A_ONE+i}, s79")
    for i in range(128): S(f"v_accvgpr_write_b32 a{A_O+i}, 0")
    for i in range(16): S(f"v_accvgpr_write_b32 a{A_L+i}, 0")
    stamp(S, 3)
    S.wait(vm=0)
    S("s_barrier")
    stamp(S, 4)
    for kb in range(2):
        for kk in range(4):
            d = A_K + 16 * kb + 4 * kk
            S(f"ds_read_b128 v[{d}:{d+3}], v{A_KAD+kk} offset:{kb*4096}")
    att_half(S, -1, do_pv=False, do_sm=False, v_reload=False, cfirst="0")
    S("s_nop 7")
    S("s_cmp_lg_u32 s78, 0")
    S(f"s_cbranch_scc1 L_{name}_havemax")
    sC = A_S
    for qb in range(4):
        m = A_NM + 4 * qb
        a = sC + 4 * qb; b = sC + 16 + 4 * qb
        S(f"v_max3_f32 v{m}, v{a}, v{a+1}, v{a+2}")
        S(f"v_max3_f32 v{m}, v{m}, v{a+3}, v{b}")
        S(f"v_max3_f32 v{m}, v{m}, v{b+1}, v{b+2}")
        S(f"v_max_f32 v{m}, v{m}, v{b+3}")
    crosslane_max(S, [A_NM + 4 * qb for qb in range(4)], A_TMP)
    for qb in range(4):
        m = A_NM + 4 * qb
        S(f"v_sub_f32 v{m}, 0, v{m}")
        for i in range(1, 4): S(f"v_mov_b32 v{m+i}, v{m}")
    S.raw(f"L_{name}_havemax:")
    for kb in range(2):
        for qb in range(4):
            for r in range(4):
                x = sC + 16 * kb + 4 * qb + r
                S(f"v_add_f32 v{x}, v{x}, v{A_NM+4*qb}")
    att_stage(S, 0, "first")
    S("s_mov_b32 s47, 7")
    n0 = len(S.ins)
    S.raw(".p2align 6")
    S.raw(f"L_{name}_a:")
    for T in (1, 2, 3, 4): att_stage(S, T)
    body1 = [x.text for x in S.ins[n0:]]
    S2 = Stream(); S2.set_state(S.state())
    S2.raw(".p2align 6"); S2.raw(f"L_{name}_a:")
    for T in (5, 6, 7, 8): att_stage(S2, T)
    b2 = [x.text for x in S2.ins]
    if body1 != b2:
        for x, y in zip(body1, b2):
            if x != y: print("DIFF", x, "|", y); break
    assert body1 == b2, "att loop body not steady"
    errs = check_hazards(S.ins[n0:] + S2.ins, "aloop"); assert not errs, "\n".join(errs[:10])
    S("s_sub_u32 s47, s47, 1\ns_cmp_lg_u32 s47, 0")
    S(f"s_cbranch_scc1 L_{name}_a")
    att_stage(S, 29); att_stage(S, 30); att_stage(S, 31, "last")
    S("s_nop 7")
    stamp(S, 5)
    T0 = 16
    for qb in range(4): S(f"v_accvgpr_read_b32 v{A_TMP+qb}, a{A_L+4*qb}")
    S("s_cmp_lg_u32 s78, 0")
    S(f"s_cbranch_scc1 L_{name}_fin")
    S(f"v_add_f32 v{A_TMP+5}, v{A_TMP}, v{A_TMP+1}\nv_add_f32 v{A_TMP+6}, v{A_TMP+2}, v{A_TMP+3}\nv_add_f32 v{A_TMP+4}, v{A_TMP+5}, v{A_TMP+6}")
    S("s_mov_b32 s79, 0x4e800000")
    S(f"v_cmp_ngt_f32 vcc, s79, v{A_TMP+4}")
    S("s_nop 3")
    S("s_cmp_lg_u64 vcc, 0")
    S("s_cselect_b32 s79, 1, 0")
    S(f"v_mov_b32 v{A_TMP+5}, s79")
    S(f"v_mov_b32 v{A_TMP+6}, s40\nv_lshlrev_b32 v{A_TMP+6}, 2, v{A_TMP+6}")
    S(f"v_add_u32 v{A_TMP+6}, {64*1024}, v{A_TMP+6}")
    S(f"ds_write_b32 v{A_TMP+6}, v{A_TMP+5}")
    S(f"v_mov_b32 v{A_TMP+6}, {64*1024}")
    S.wait(lg=0)
    S("s_barrier")
    S(f"ds_read_b128 v[{A_TMP+8}:{A_TMP+11}], v{A_TMP+6}")
    S(f"v_or_b32 v{A_TMP+8}, v{A_TMP+8}, v{A_TMP+9}\nv_or_b32 v{A_TMP+10}, v{A_TMP+10}, v{A_TMP+11}\nv_or_b32 v{A_TMP+8}, v{A_TMP+8}, v{A_TMP+10}")
    S("s_nop 0")
    S(f"v_readfirstlane_b32 s79, v{A_TMP+8}")
    S("s_nop 1")
    S("s_cmp_lg_u32 s79, 0")
    S(f"s_cbranch_scc1 L_{name}_fb")
    S.raw(f"L_{name}_fin:")
    for qb in range(4): S(f"v_rcp_f32 v{A_TMP+qb}, v{A_TMP+qb}")
    for qb in range(4):
        B = T0 + 32 * qb
        for i in range(32): S(f"v_accvgpr_read_b32 v{B+i}, a{A_O+32*qb+i}")
        for i in range(32): S(f"v_mul_f32 v{B+i}, v{B+i}, v{A_TMP+qb}")
        D = 148 + 16 * qb
        for i in range(16): S(f"v_cvt_pk_bf16_f32 v{D+i}, v{B+2*i}, v{B+2*i+1}")
        for ks in range(4):
            S(f"s_mov_b32 s79, {8192*ks}")
            S(f"buffer_store_dwordx4 v[{D+4*ks}:{D+4*ks+3}], v{V_H}, s[36:39], s79 offen offset:{1024*qb}")
    stamp(S, 6)
    if STAMPS: S.wait(vm=0)
    stamp(S, 7)
    stamp_dump(S, 1, 8)
    S.raw(f"L_{name}_end:")
    S("s_endpgm")
    S.raw(f"L_{name}_fb:")
    S.lg = []; S.vm = []
    S("s_mov_b32 s78, 1")
    for qb in range(4): S(f"v_mov_b32 v{A_NM+4*qb}, 0xff800000")
    for i in range(4): S(f"v_subrev_u32 v{V_KV+i}, 0x4000, v{V_KV+i}")
    S("s_mov_b32 s56, 0")
    S("s_mov_b32 s47, 32")
    S.raw(f"L_{name}_fbl:")
    S("s_barrier")
    for i in range(4): S(kv_dma("K", 0, i))
    S("s_add_u32 s56, s56, 0x4000")
    S.wait(vm=0)
    S("s_barrier")
    for half in range(2):
        for kb in range(2):
            for kk in range(4):
                d = A_K + 16 * kb + 4 * kk
                S(f"ds_read_b128 v[{d}:{d+3}], v{A_KAD+kk} offset:{half*8192 + kb*4096}")
        att_half(S, -1, do_pv=False, do_sm=False, v_reload=False, k_reload=False, cfirst="0")
        S("s_nop 7")
        for qb in range(4):
            m = A_NM + 4 * qb
            a = sC + 4 * qb; b = sC + 16 + 4 * qb
            S(f"v_max3_f32 v{m}, v{m}, v{a}, v{a+1}")
            S(f"v_max3_f32 v{m}, v{m}, v{a+2}, v{a+3}")
            S(f"v_max3_f32 v{m}, v{m}, v{b}, v{b+1}")
            S(f"v_max3_f32 v{m}, v{m}, v{b+2}, v{b+3}")
    S("s_sub_u32 s47, s47, 1\ns_cmp_lg_u32 s47, 0")
    S(f"s_cbranch_scc1 L_{name}_fbl")
    crosslane_max(S, [A_NM + 4 * qb for qb in range(4)], A_TMP)
    for qb in range(4):
        m = A_NM + 4 * qb
        S(f"v_sub_f32 v{m}, 0, v{m}")
        for i in range(1, 4): S(f"v_mov_b32 v{m+i}, v{m}")
    S("s_barrier")
    for T in range(3):
        for i in range(4): S(kv_dma("K", T, i, soff=f"s{73+T}"))
    for T in range(2):
        for i in range(4): S(kv_dma("V", T, i, soff=f"s{73+T}"))
    for i in range(4): S(f"v_add_u32 v{V_KV+i}, 0x4000, v{V_KV+i}")
    S(f"s_branch L_{name}_att")
    errs = check_hazards(S.ins, name)
    assert not errs, "\n".join(errs[:20])
    return S.text(), kernel_desc(name, 512, 256, 102), f"; @launch kernel={name} grid=(256,1,1) block=(256,1,1) lds=163840"
```

```python
from asmlib import *
from layout import *
import os

NSL = int(os.environ.get("K3_NSL", 10))
BI = int(os.environ.get("K3_BI", 1))
DL = int(os.environ.get("K3_DL", 4))
DE = int(os.environ.get("K3_DE", NSL))
EXP = os.environ.get("K3_EXP", "")
SLOT = 16384
PA = os.environ.get("K3_PA", ""); PW = os.environ.get("K3_PW", ""); PAE = os.environ.get("K3_PAE", PA); PWE = os.environ.get("K3_PWE", PW)
ACC = 16
WF = 80
TF = 112
XR = 144
V_LA = 1; V_LW = 2
V_A = 6; V_W = 7
V_EX = 11; V_XO = 12
PN = 176
PEEK = int(os.environ.get("K3_PEEK", 4)); PCHK = int(os.environ.get("K3_PCHK", 1))

def comp_step(S, par, bar):
    S.wait(lg=0)
    if bar: S("s_barrier")
    mf = []
    for nbl in range(4):
        for mb in range(4):
            c = ACC + 16 * nbl + 4 * mb
            a = WF + 16 * par + 4 * nbl; b = TF + 16 * par + 4 * mb
            mf.append(f"v_mfma_f32_16x16x32_bf16 v[{c}:{c+3}], v[{a}:{a+3}], v[{b}:{b+3}], v[{c}:{c+3}]")
    q = par ^ 1
    rd = []
    for i in range(4):
        d = TF + 16 * q + 4 * i
        rd.append(f"ds_read_b128 v[{d}:{d+3}], v{V_A} offset:{1024*i}")
        d = WF + 16 * q + 4 * i
        rd.append(f"ds_read_b64_tr_b16 v[{d}:{d+1}], v{V_W+i}")
        rd.append(f"ds_read_b64_tr_b16 v[{d+2}:{d+3}], v{V_W+i} offset:2048")
    if "noread" in EXP: rd = []
    fill = []
    pos = [0, 0, 1, 1, 2, 3, 4, 5, 6, 7, 8, 9]
    for p, r in zip(pos, rd): fill.append((p, r))
    fill.append((9, f"s_add_u32 s50, s50, {SLOT}"))
    fill.append((9, f"s_cmp_eq_u32 s50, {NSL*SLOT}"))
    fill.append((10, "s_cselect_b32 s50, 0, s50"))
    fill.append((11, f"v_add_u32 v{V_A}, s50, v{V_LA}"))
    for i in range(4): fill.append((12 + i, f"v_add_u32 v{V_W+i}, s50, v{V_LW+i}"))
    if "nomfma" in EXP:
        for _, t in fill: S(t)
    else:
        weave(S, mf, fill)

def gen_k3(name="out_kernel"):
    S = Stream()
    S.raw(kernel_head(name))
    S("s_cmp_ge_u32 s2, 256")
    S(f"s_cbranch_scc1 L_{name}_end")
    S(f"s_load_dwordx2 s[60:61], s[0:1], {KA_WS}")
    S(f"s_load_dwordx2 s[62:63], s[0:1], {KA_WO}")
    S(f"s_load_dwordx2 s[64:65], s[0:1], {KA_WD}")
    S(f"s_load_dwordx2 s[66:67], s[0:1], {KA_X}")
    S(f"s_load_dwordx4 s[68:71], s[0:1], {KA_OUT}")
    S("v_lshrrev_b32 v15, 6, v0")
    S("v_and_b32 v0, 63, v0")
    S("v_readfirstlane_b32 s40, v15")
    S("s_bfe_u32 s41, s2, 0x10002")
    S("s_and_b32 s42, s2, 1\ns_lshl_b32 s42, s42, 3\ns_bfe_u32 s47, s2, 0x30003\ns_add_u32 s42, s42, s47")
    S("s_bfe_u32 s45, s2, 0x10001\ns_lshl_b32 s45, s45, 2\ns_lshr_b32 s46, s2, 6\ns_add_u32 s45, s45, s46")
    S("s_movk_i32 s51, 128")
    S("s_cmp_lg_u32 s41, 0")
    S(f"s_cselect_b32 s51, {112}, s51")
    stamp(S, 0)
    S("s_cmp_lt_u32 s40, 4")
    S(f"s_cbranch_scc1 L_{name}_comp")
    S("v_lshrrev_b32 v16, 3, v0\nv_and_b32 v17, 7, v0")
    S("v_and_b32 v18, 6, v16\nv_xor_b32 v18, v18, v17")
    S("v_lshlrev_b32 v19, 11, v16\nv_lshl_add_u32 v19, v18, 4, v19")
    S("v_lshlrev_b32 v20, 4, v0")
    S.raw("s_waitcnt lgkmcnt(0)")
    S(f"s_mov_b32 s48, {128*8192}\ns_mov_b32 s49, {WS_O}\ns_mov_b32 s14, {4096*2048}")
    S("s_cmp_lg_u32 s41, 0")
    S(f"s_cselect_b32 s48, {112*8192}, s48")
    S(f"s_cselect_b32 s49, {WS_H}, s49")
    S("s_cselect_b32 s12, s64, s62\ns_cselect_b32 s13, s65, s63")
    S(f"s_cselect_b32 s14, {3584*2048}, s14")
    S("s_mul_i32 s50, s42, s48\ns_add_u32 s50, s50, s49")
    S("s_add_u32 s8, s60, s50\ns_addc_u32 s9, s61, 0\ns_mov_b32 s10, s48\ns_mov_b32 s11, 0x20000")
    S("s_lshl_b32 s50, s45, 8")
    S("s_add_u32 s12, s12, s50\ns_addc_u32 s13, s13, 0\ns_sub_u32 s14, s14, s50\ns_mov_b32 s15, 0x20000")
    S("s_mov_b32 s43, 0\ns_mov_b32 s44, 0\ns_mov_b32 s50, 0")
    S("s_lshl_b32 s46, s46, 1")
    plan = {4: ([0, 1], [0], DE), 5: ([2, 3], [1, 2], DL), 6: ([4, 5], [3, 4], DL), 7: ([6, 7], [5, 6, 7], DL)}
    for w in (4, 5, 6, 7):
        ap, wp, D = plan[w]
        if w < 7:
            S(f"s_cmp_lg_u32 s40, {w}")
            S(f"s_cbranch_scc1 L_{name}_ld{w+1}")
        for i, p in enumerate(ap):
            S(f"s_add_u32 s52, s46, {p}\ns_and_b32 s52, s52, 7\ns_lshl_b32 s{53+i}, s52, 10")
            S(f"v_add_u32 v{24+i}, s{53+i}, v20")
        for i, p in enumerate(wp):
            k = len(ap) + i
            S(f"s_add_u32 s52, s47, {p}\ns_and_b32 s52, s52, 7\ns_lshl_b32 s{53+k}, s52, 10\ns_add_u32 s{53+k}, s{53+k}, 8192")
            S(f"s_and_b32 s59, s52, 3\ns_lshl_b32 s59, s59, 14\ns_lshr_b32 s52, s52, 2\ns_lshl_b32 s52, s52, 7\ns_add_u32 s59, s59, s52")
            S(f"v_add_u32 v{24+k}, s59, v19")
        npc = len(ap) + len(wp)
        def issue():
            for i in range(npc):
                S(f"s_add_u32 m0, s50, s{53+i}")
                if i < len(ap):
                    S("s_nop 0")
                    S(f"buffer_load_dwordx4 v{24+i}, s[8:11], s43 offen {PAE if w == 4 else PA} lds")
                else:
                    S("s_nop 0")
                    S(f"buffer_load_dwordx4 v{24+i}, s[12:15], s44 offen {PWE if w == 4 else PW} lds")
            S(f"s_add_u32 s43, s43, 8192\ns_add_u32 s44, s44, 0x10000")
            S(f"s_add_u32 s50, s50, {SLOT}\ns_cmp_eq_u32 s50, {NSL*SLOT}\ns_cselect_b32 s50, 0, s50")
        for u in range(D - BI + 1): issue()
        S.wait(vm=min(63, (D - BI) * npc))
        S("s_barrier")
        S(f"s_lshr_b32 s51, s51, {BI-1}")
        S.raw(f"L_{name}_ldl{w}:")
        S.wait(vm=(D - 2 * BI) * npc)
        S("s_barrier")
        for u in range(BI): issue()
        S("s_sub_u32 s51, s51, 1\ns_cmp_lg_u32 s51, 0")
        S(f"s_cbranch_scc1 L_{name}_ldl{w}")
        S.wait(vm=0)
        S("s_endpgm")
        if w < 7: S.raw(f"L_{name}_ld{w+1}:")
    S.raw(f"L_{name}_comp:")
    S.lg = []; S.vm = []
    S("s_setprio 3")
    S("v_and_b32 v13, 1, v15\nv_lshrrev_b32 v14, 1, v15")
    S(f"v_lshlrev_b32 v{V_LA}, 4, v0\nv_lshl_add_u32 v{V_LA}, v13, 12, v{V_LA}")
    S("v_bfe_u32 v16, v0, 2, 3\nv_lshrrev_b32 v17, 1, v16\nv_lshrrev_b32 v18, 5, v0\nv_and_b32 v19, 3, v0")
    S("v_lshlrev_b32 v20, 10, v18\nv_lshl_add_u32 v20, v16, 7, v20\nv_lshl_add_u32 v20, v17, 5, v20\nv_lshl_add_u32 v20, v19, 3, v20")
    S("v_lshl_add_u32 v20, v14, 12, v20\nv_add_u32 v20, 8192, v20")
    for nbl in range(4):
        S(f"v_xor_b32 v{V_LW+nbl}, {32*nbl}, v20")
    S(f"v_lshlrev_b32 v{V_EX}, 4, v0\nv_lshl_add_u32 v{V_EX}, v15, 13, v{V_EX}")
    S("v_and_b32 v16, 15, v0\nv_lshl_add_u32 v16, v13, 6, v16\nv_lshlrev_b32 v16, 11, v16")
    S("v_bfe_u32 v17, v0, 4, 1\nv_lshl_add_u32 v16, v17, 5, v16")
    S(f"v_lshrrev_b32 v17, 5, v0\nv_lshl_add_u32 v16, v17, 4, v16")
    S(f"v_lshl_add_u32 v{V_XO}, v14, 7, v16")
    S.raw("s_waitcnt lgkmcnt(0)")
    S("s_lshl_b32 s50, s45, 8")
    S("s_lshl_b32 s52, s42, 3\ns_add_u32 s52, s52, s45")
    S("s_lshl_b32 s56, s52, 2\ns_add_u32 s56, s56, s40")
    S(f"s_lshl_b32 s52, s52, 15\ns_add_u32 s52, s52, {WS_EX}")
    S("s_lshl_b32 s53, s41, 22\ns_add_u32 s54, s52, s53")
    S("s_xor_b32 s53, s53, 0x400000\ns_add_u32 s55, s52, s53")
    S("s_add_u32 s16, s60, s54\ns_addc_u32 s17, s61, 0\ns_mov_b32 s18, 0x8000\ns_mov_b32 s19, 0x20000")
    S("s_add_u32 s20, s60, s55\ns_addc_u32 s21, s61, 0\ns_mov_b32 s22, 0x8000\ns_mov_b32 s23, 0x20000")
    S("s_lshl_b32 s52, s42, 18\ns_add_u32 s52, s52, s50")
    S("s_sub_u32 s53, 0x400000, s52")
    S("s_add_u32 s24, s66, s52\ns_addc_u32 s25, s67, 0\ns_mov_b32 s26, s53\ns_mov_b32 s27, 0x20000")
    S("s_add_u32 s28, s68, s52\ns_addc_u32 s29, s69, 0\ns_mov_b32 s30, s53\ns_mov_b32 s31, 0x20000")
    S(f"s_add_u32 s32, s60, {WS_FL}\ns_addc_u32 s33, s61, 0\ns_mov_b32 s34, 0x10000\ns_mov_b32 s35, 0x20000")
    S("s_lshl_b32 s57, s56, 7")
    S("v_mov_b32 v13, 0")
    S("s_mov_b32 s58, 0")
    S("s_mov_b32 s72, 0\ns_mov_b32 s73, 0x8000\ns_mov_b32 s74, 0x10000\ns_mov_b32 s75, 0x18000")
    S("s_mov_b32 s76, 0\ns_mov_b32 s77, 4096")
    for i in range(64): S(f"v_mov_b32 v{ACC+i}, 0")
    S("s_lshr_b32 s51, s51, 1")
    S("s_barrier")
    stamp(S, 1)
    for i in range(4):
        d = TF + 4 * i
        S(f"ds_read_b128 v[{d}:{d+3}], v{V_LA} offset:{1024*i}")
        d = WF + 4 * i
        S(f"ds_read_b64_tr_b16 v[{d}:{d+1}], v{V_LW+i}")
        S(f"ds_read_b64_tr_b16 v[{d+2}:{d+3}], v{V_LW+i} offset:2048")
    S(f"s_mov_b32 s50, {SLOT}")
    S(f"v_add_u32 v{V_A}, s50, v{V_LA}")
    for i in range(4): S(f"v_add_u32 v{V_W+i}, s50, v{V_LW+i}")
    for pr in range(2):
        for mb in range(4):
            d = XR + 16 * pr + 4 * mb
            S(f"buffer_load_dwordx4 v[{d}:{d+3}], v{V_XO}, s[24:27], s{72+mb} offen offset:{64*pr}")
    n0 = len(S.ins)
    S.raw(".p2align 6"); S.raw(f"L_{name}_g:")
    comp_step(S, 0, True)
    comp_step(S, 1, BI == 1)
    S2 = Stream(); S2.set_state(S.state())
    comp_step(S2, 0, True); comp_step(S2, 1, BI == 1)
    errs = check_hazards(S.ins[n0:] + S2.ins, "k3loop"); assert not errs, "\n".join(errs[:10])
    S(f"s_sub_u32 s51, s51, 1\ns_cmp_gt_u32 s51, {PEEK}")
    S(f"s_cbranch_scc1 L_{name}_g")
    S(f"s_cmp_lg_u32 s51, {PEEK}")
    S(f"s_cbranch_scc1 L_{name}_np")
    S("buffer_load_dword v14, v13, s[32:35], s57 offen sc0 sc1")
    S(f"s_branch L_{name}_g")
    S.raw(f"L_{name}_np:")
    S(f"s_cmp_lg_u32 s51, {PCHK}")
    S(f"s_cbranch_scc1 L_{name}_nc")
    S.wait(vm=0)
    S("v_readfirstlane_b32 s58, v14")
    S("s_nop 1")
    S("s_cmp_eq_u32 s58, 0")
    S(f"s_cbranch_scc1 L_{name}_g")
    for i in range(8):
        S(f"buffer_load_dwordx4 v[{PN+4*i}:{PN+4*i+3}], v{V_EX}, s[20:23], s{76+i//4} offen offset:{1024*(i%4)} sc0 sc1")
    S(f"s_branch L_{name}_g")
    S.raw(f"L_{name}_nc:")
    S("s_cmp_lg_u32 s51, 0")
    S(f"s_cbranch_scc1 L_{name}_g")
    S.wait(lg=0)
    stamp(S, 2)
    S("s_mov_b32 s87, 0")
    S("s_cmp_lg_u32 s58, 0")
    S(f"s_cbranch_scc1 L_{name}_nopeek")
    S("buffer_load_dword v14, v13, s[32:35], s57 offen sc0 sc1")
    S.raw(f"L_{name}_nopeek:")
    S("s_mov_b32 s59, 0xffff0000")
    S("s_nop 4")
    S("s_cmp_eq_u32 s41, 0")
    S(f"s_cbranch_scc1 L_{name}_pack")
    T = 80
    for i in range(32): S(f"v_cvt_pk_bf16_f32 v{T+i}, v{ACC+2*i}, v{ACC+2*i+1}")
    for i in range(32):
        S(f"v_lshlrev_b32 v{ACC+2*i}, 16, v{T+i}")
        S(f"v_and_b32 v{ACC+2*i+1}, s59, v{T+i}")
    for i in range(64): S(f"v_mul_f32 v{T+i}, 0xbfb8aa3b, v{ACC+i}")
    for i in range(64): S(f"v_exp_f32 v{T+i}, v{T+i}")
    for i in range(64): S(f"v_add_f32 v{T+i}, 1.0, v{T+i}")
    for i in range(64): S(f"v_rcp_f32 v{T+i}, v{T+i}")
    for i in range(64): S(f"v_mul_f32 v{ACC+i}, v{ACC+i}, v{T+i}")
    S.raw(f"L_{name}_pack:")
    M = 80
    for i in range(32): S(f"v_cvt_pk_bf16_f32 v{M+i}, v{ACC+2*i}, v{ACC+2*i+1}")
    S("s_cmp_lg_u32 s58, 0")
    S(f"s_cbranch_scc1 L_{name}_final2")
    S.wait(vm=0)
    S("v_readfirstlane_b32 s36, v14")
    S("s_nop 1")
    S("s_cmp_lg_u32 s36, 0")
    S(f"s_cbranch_scc1 L_{name}_final")
    for i in range(8):
        S(f"buffer_store_dwordx4 v[{M+4*i}:{M+4*i+3}], v{V_EX}, s[16:19], s{76+i//4} offen offset:{1024*(i%4)} sc0 sc1")
    S("v_mov_b32 v14, 1")
    S.wait(vm=0)
    S("s_mov_b64 s[38:39], exec\ns_mov_b64 exec, 1")
    S("buffer_atomic_add v14, v13, s[32:35], s57 offen sc0 sc1")
    S.wait(vm=0)
    S("s_mov_b64 exec, s[38:39]")
    S("v_readfirstlane_b32 s36, v14")
    S("s_nop 1")
    S("s_cmp_eq_u32 s36, 0")
    S(f"s_cbranch_scc1 L_{name}_end2")
    S.raw(f"L_{name}_final:")
    S("s_mov_b32 s87, 1")
    Pn = PN; X = XR
    for i in range(8):
        S(f"buffer_load_dwordx4 v[{Pn+4*i}:{Pn+4*i+3}], v{V_EX}, s[20:23], s{76+i//4} offen offset:{1024*(i%4)} sc0 sc1")
    S.raw(f"L_{name}_final2:")
    A = 16; B = 112
    for i in range(32):
        S(f"v_lshlrev_b32 v{A+2*i}, 16, v{M+i}")
        S(f"v_and_b32 v{A+2*i+1}, s59, v{M+i}")
    S.wait(vm=0)
    for i in range(32):
        S(f"v_lshlrev_b32 v{B+i}, 16, v{Pn+i}")
        S(f"v_and_b32 v{Pn+i}, s59, v{Pn+i}")
    for i in range(32):
        S(f"v_mul_f32 v{A+2*i}, v{A+2*i}, v{B+i}")
        S(f"v_mul_f32 v{A+2*i+1}, v{A+2*i+1}, v{Pn+i}")
    for pr in range(2):
        for mb in range(4):
            for sub in range(2):
                for h in range(2):
                    src = A + 16 * (2 * pr + sub) + 4 * mb + 2 * h
                    S(f"v_cvt_pk_bf16_f32 v{M + 16*pr + 4*mb + 2*sub + h}, v{src}, v{src+1}")
    S("s_nop 1")
    for k in range(8):
        S(f"v_permlane16_swap_b32 v{M+4*k}, v{M+4*k+2}")
        S(f"v_permlane16_swap_b32 v{M+4*k+1}, v{M+4*k+3}")
    for i in range(32):
        S(f"v_lshlrev_b32 v{A+2*i}, 16, v{M+i}")
        S(f"v_and_b32 v{A+2*i+1}, s59, v{M+i}")
    for i in range(32):
        S(f"v_lshlrev_b32 v{B+i}, 16, v{X+i}")
        S(f"v_and_b32 v{X+i}, s59, v{X+i}")
    for i in range(32):
        S(f"v_add_f32 v{A+2*i}, v{A+2*i}, v{B+i}")
        S(f"v_add_f32 v{A+2*i+1}, v{A+2*i+1}, v{X+i}")
    for i in range(32): S(f"v_cvt_pk_bf16_f32 v{M+i}, v{A+2*i}, v{A+2*i+1}")
    for pr in range(2):
        for mb in range(4):
            d = M + 16 * pr + 4 * mb
            S(f"buffer_store_dwordx4 v[{d}:{d+3}], v{V_XO}, s[28:31], s{72+mb} offen offset:{64*pr}")
    S.raw(f"L_{name}_end2:")
    if STAMPS: S.wait(vm=0)
    stamp(S, 4)
    stamp_dump(S, 2, 5)
    if STAMPS:
        S("s_or_b32 s100, s2, s40\ns_cmp_lg_u32 s100, 0")
        S(f"s_cbranch_scc1 L_{name}_end")
        S(f"s_add_u32 s96, s60, {WS_DBG}\ns_addc_u32 s97, s61, 0\ns_mov_b32 s98, 0x300000\ns_mov_b32 s99, 0x20000")
        S("s_mov_b32 s32, s70\ns_mov_b32 s33, s71\ns_mov_b32 s34, 256\ns_mov_b32 s35, 0x20000")
        S("v_mov_b32 v250, 0")
        o = 0
        for kidx, n in ((0, 2), (1, 8), (2, 5)):
            S(f"s_mov_b32 s100, {kidx*1048576}")
            for i in range(n):
                S(f"buffer_load_dword v251, v250, s[96:99], s100 offen offset:{4*i} sc0 sc1")
                S.wait(vm=0)
                S(f"buffer_store_dword v251, v250, s[32:35], 0 offen offset:{4*o}")
                S.wait(vm=0)
                o += 1
    S.raw(f"L_{name}_end:")
    S("s_endpgm")
    errs = check_hazards(S.ins, name)
    assert not errs, "\n".join(errs[:20])
    return S.text(), kernel_desc(name, 256, 256, 102), f"; @launch kernel={name} grid=(256,1,1) block=(512,1,1) lds={NSL*SLOT}"
```

```python
from asmlib import *
from layout import *
import math

import os
PFW = int(os.environ.get('K2_PFW', 1))
LA = 6
RA = 8
NG = 22
SLOT = 24576
KRING = 96 * 1024
VRING = 0

GU0 = 16
QACC = 0
BR = 128
AR = 192
V_TOK = 1; V_Q = 2; V_X = 3; V_Y = 4; V_H = 5
V_AD = 240
A_S = 16
A_P = 80
A_E = 112
A_NM = 128
A_ONE = 144
A_K = 148
A_V = 180
A_KAD = 212
A_VAD = 216
A_TMP = 224
V_KV = 6
V_O = 12
A_O = 0
A_Q = 128
A_L = 192

def acc(nb, mb):
    if nb < 8:
        r = QACC + 16 * nb + 4 * mb; return f"a[{r}:{r+3}]"
    k = nb - 8; b = k // 2; u = k % 2
    r = GU0 + 32 * b + 16 * u + 4 * mb; return f"v[{r}:{r+3}]"

def a_reads(stage, nb):
    slot = stage % 4
    st = 1 if slot >= 2 else 0
    base = (slot % 2) * SLOT
    ring = (NG * stage + nb) % RA
    d = AR + 4 * ring
    if nb < 8:
        half = nb >> 2; p64 = (nb >> 1) & 1; T = nb & 1
        ad = V_AD + 8 + 2 * st + p64
        off = base + half * 4096 + 8 * T
    else:
        k = nb - 8; b = k // 2; u = k % 2
        mh = 2 + 2 * u + (b >> 2)
        ad = V_AD + 4 * st + (b & 3)
        off = base + mh * 4096
    return [f"ds_read_b64_tr_b16 a[{d}:{d+1}], v{ad} offset:{off}",
            f"ds_read_b64_tr_b16 a[{d+2}:{d+3}], v{ad} offset:{off+512}"]

def gemm_load_op(L, q):
    slot = L % 4
    if q < 6:
        mat = q // 2; half = q % 2
        dst = slot * SLOT + q * 4096
        if mat == 0:
            t = f"s_add_u32 m0, s46, {dst - 128*half if dst - 128*half >= 0 else 0}\n"
            assert dst - 128 * half >= 0
            t += "s_nop 0\n"
            t += f"buffer_load_dwordx4 v{V_Q}, s[12:15], s44 offen offset:{128*half} lds"
            if half == 1: t += "\ns_add_u32 s44, s44, 0x40000"
        else:
            srd = "s[16:19]" if mat == 1 else "s[20:23]"
            t = f"s_add_u32 m0, s46, {dst}\ns_nop 0\n"
            t += f"buffer_load_dwordx4 v{V_X if half == 0 else V_Y}, {srd}, s45 offen lds"
            if q == 5: t += f"\ns_add_u32 s45, s45, {32*7168}"
        return t
    mb = q - 6
    d = BR + 16 * slot + 4 * mb
    t = f"buffer_load_dwordx4 a[{d}:{d+3}], v{V_TOK}, s[8:11], s43 offen offset:{1024*mb}"
    if mb == 3: t += "\ns_add_u32 s43, s43, 0x4000"
    return t

def kv_dma(which, slot, i, soff="s56"):
    t = ""
    if which == "K":
        if i == 0: t += f"s_add_u32 m0, s57, {KRING + slot*16384}\ns_nop 0\n"
        t += f"buffer_load_dwordx4 v{V_KV+i}, s[24:27], {soff} offen offset:{1024*i} lds"
    else:
        if i == 0: t += f"s_add_u32 m0, s57, {VRING + slot*16384}\ns_nop 0\n"
        t += f"buffer_load_dwordx4 v{V_KV+4+(i&1)}, s[28:31], {soff} offen offset:{1024*i} lds"
    return t

def gemm_stages(S, stages, last=31, tail_ops=None, first=False):
    tail_ops = list(tail_ops or [])
    for s in stages:
        for nb in range(NG):
            ring = (NG * s + nb) % RA
            a = AR + 4 * ring
            mf = []
            for mb in range(4):
                b = BR + 16 * (s % 4) + 4 * mb
                c = acc(nb, mb)
                mf.append(f"v_mfma_f32_16x16x32_bf16 {c}, a[{a}:{a+3}], a[{b}:{b+3}], {c}")
            fill = []
            ab = NG * s + nb + LA
            s2, nb2 = divmod(ab, NG)
            if s2 <= last:
                r = a_reads(s2, nb2)
                fill.append((0, r[0])); fill.append((1, r[1]))
            for sp in (s, s - 1):
                q = NG * s + nb - (NG * sp + NG - LA)
                if 0 <= q < 10:
                    if sp + 3 <= last:
                        fill.append((2, gemm_load_op(sp + 3, q)))
                    elif tail_ops:
                        fill.append((2, tail_ops.pop(0)))
            weave(S, mf, fill)
            if nb == NG - LA - 1 and s + 1 <= last:
                S.bar_hook(s)
    assert not tail_ops

def att_half(S, t, do_qk=True, do_pv=True, do_sm=True, k_reload=True, v_reload=True, dma=None, pre=None, cfirst=None):
    p = t & 1
    T = t >> 1
    sN = A_S + 32 * (p ^ 1); sC = A_S + 32 * p
    pW = A_P + 16 * p; pR = A_P + 16 * (p ^ 1)
    mf = []; lds = []
    kslot = ((t + 2) >> 1) % 4; khalf = (t + 2) & 1
    vslot = T % 4; vhalf = p
    def kread(kb, kk):
        d = A_K + 16 * kb + 4 * kk
        return f"ds_read_b128 v[{d}:{d+3}], v{A_KAD+kk} offset:{kslot*16384 + khalf*8192 + kb*4096}"
    def vread(db, n):
        d = A_V + 4 * db + 2 * n
        return f"ds_read_b64_tr_b16 v[{d}:{d+1}], v{A_VAD+db} offset:{vslot*16384 + vhalf*8192 + n*4096}"
    for kb in range(2):
        for kk in range(4):
            if do_qk:
                for qb in range(4):
                    d = sN + 16 * kb + 4 * qb
                    if kk == 0:
                        c = cfirst if cfirst is not None else f"v[{A_NM+4*qb}:{A_NM+4*qb+3}]"
                    else:
                        c = f"v[{d}:{d+3}]"
                    ka = A_K + 16 * kb + 4 * kk; qa = A_Q + 16 * qb + 4 * kk
                    mf.append(f"v_mfma_f32_16x16x32_bf16 v[{d}:{d+3}], v[{ka}:{ka+3}], a[{qa}:{qa+3}], {c}")
            if k_reload: lds.append((len(mf) - 1, kread(kb, kk)))
    for db in range(8):
        if do_pv:
            for qb in range(4):
                o = A_O + 32 * qb + 4 * db; va = A_V + 4 * db; pa = pR + 4 * qb
                mf.append(f"v_mfma_f32_16x16x32_bf16 a[{o}:{o+3}], v[{va}:{va+3}], v[{pa}:{pa+3}], a[{o}:{o+3}]")
            if db % 2 == 1:
                qb = db // 2
                l = A_L + 4 * qb; pa = pR + 4 * qb
                mf.append(f"v_mfma_f32_16x16x32_bf16 a[{l}:{l+3}], v[{A_ONE}:{A_ONE+3}], v[{pa}:{pa+3}], a[{l}:{l+3}]")
        if v_reload:
            e = len(mf) - 1 - (1 if (do_pv and db % 2 == 1) else 0)
            lds.append((e, vread(db, 0))); lds.append((e, vread(db, 1)))
    valu = []
    if do_sm:
        seq = []
        for qb in range(4):
            for kb in range(2):
                for r in range(4):
                    seq.append((qb, kb, r))
        pend = []
        for i, (qb, kb, r) in enumerate(seq):
            valu.append((8, f"v_exp_f32 v{A_E + i % 16}, v{sC + 16*kb + 4*qb + r}"))
            if pend and i >= pend[0][0] + 2:
                valu.append((4, pend.pop(0)[1]))
            if r % 2 == 1:
                pend.append((i, f"v_cvt_pk_bf16_f32 v{pW + 4*qb + 2*kb + r//2}, v{A_E + (i-1) % 16}, v{A_E + i % 16}"))
        for _, x in pend: valu.append((4, x))
    dm = list(dma or [])
    n = len(mf)
    if pre: S(pre)
    if n == 0:
        for _, x in lds: S(x)
        last_trans = False
        for c, x in valu:
            if last_trans and c == 4: S("s_nop 0")
            S(x); last_trans = (c == 8)
        for x in dm: S(x)
        return
    tot_v = sum(c for c, _ in valu)
    done_v = 0
    vi = 0; li = 0; di = 0
    dpos = [int((k + 0.5) * n / max(1, len(dm))) for k in range(len(dm))]
    for g in range(n):
        S(mf[g])
        cap = 8
        lastgap = (g == n - 1)
        prev_trans = False
        while True:
            want_v = vi < len(valu) and (done_v < tot_v * (g + 1) / n or lastgap)
            can_l = li < len(lds) and lds[li][0] <= g
            can_d = di < len(dm) and dpos[di] <= g
            if can_d and (cap >= 8 or lastgap):
                S(dm[di]); di += 1; cap -= 8; prev_trans = False
            elif want_v and (valu[vi][0] <= cap or lastgap) and not (can_l and lds[li][0] + 3 <= g and cap >= 4):
                if prev_trans and valu[vi][0] == 4: S("s_nop 0")
                prev_trans = valu[vi][0] == 8
                S(valu[vi][1]); done_v += valu[vi][0]; cap -= valu[vi][0]; vi += 1
            elif can_l and (cap >= 4 or lastgap):
                S(lds[li][1]); li += 1; cap -= 4; prev_trans = False
            else:
                break
    assert vi == len(valu) and li == len(lds) and di == len(dm)

def att_stage(S, T, kind="mid"):
    kd = [kv_dma("K", (T + 3) % 4, i) for i in range(4)]
    vd = [kv_dma("V", (T + 2) % 4, i) for i in range(4)]
    vd[3] += "\ns_add_u32 s56, s56, 0x4000"
    if kind == "first":
        att_half(S, 2 * T, do_pv=False, dma=kd)
        att_half(S, 2 * T + 1, dma=vd)
    elif kind == "last":
        S.wait(vm=0); S("s_barrier")
        att_half(S, 2 * T, k_reload=False)
        att_half(S, 2 * T + 1, do_qk=False, k_reload=False)
        att_half(S, 2 * T + 2, do_qk=False, do_sm=False, k_reload=False, v_reload=False)
    else:
        S.wait(vm=8); S("s_barrier")
        att_half(S, 2 * T, dma=kd)
        att_half(S, 2 * T + 1, dma=vd)

def crosslane_max(S, regs, tmp):
    for r in regs:
        S(f"v_mov_b32 v{tmp}, v{r}")
        S("s_nop 1")
        S(f"v_permlane16_swap_b32 v{tmp}, v{r}")
        S("s_nop 1")
        S(f"v_max_f32 v{r}, v{r}, v{tmp}")
        S(f"v_mov_b32 v{tmp}, v{r}")
        S("s_nop 1")
        S(f"v_permlane32_swap_b32 v{tmp}, v{r}")
        S("s_nop 1")
        S(f"v_max_f32 v{r}, v{r}, v{tmp}")

def gen_k2(name="main_kernel"):
    S = Stream()
    S.raw(kernel_head(name))
    S("s_cmp_ge_u32 s2, 256")
    S(f"s_cbranch_scc1 L_{name}_end")
    S(f"s_load_dwordx2 s[60:61], s[0:1], {KA_WS}")
    S(f"s_load_dwordx2 s[62:63], s[0:1], {KA_WQ}")
    S(f"s_load_dwordx4 s[64:67], s[0:1], {KA_WG}")
    S(f"s_load_dwordx4 s[68:71], s[0:1], {KA_K}")
    stamp(S, 0)
    S("v_lshrrev_b32 v13, 6, v0")
    S("v_and_b32 v0, 63, v0")
    S("v_readfirstlane_b32 s40, v13")
    S("s_and_b32 s41, s2, 7\ns_lshl_b32 s41, s41, 2\ns_bfe_u32 s42, s2, 0x20003\ns_add_u32 s41, s41, s42")
    S("s_lshr_b32 s42, s2, 5")
    S("s_lshl_b32 s46, s40, 10")
    S("s_lshl_b32 s57, s40, 12")
    S("v_lshrrev_b32 v14, 3, v0")
    S("v_and_b32 v15, 7, v0")
    S("v_bfe_u32 v240, v14, 1, 1")
    S("v_and_b32 v241, 1, v13")
    S("v_lshl_add_u32 v240, v241, 1, v240")
    S("v_lshlrev_b32 v240, 1, v240")
    S("v_xor_b32 v240, v240, v15")
    S("v_lshl_add_u32 v241, v13, 3, v14")
    S(f"v_lshlrev_b32 v{V_Q}, 13, v241")
    S(f"v_lshl_add_u32 v{V_Q}, v240, 4, v{V_Q}")
    S("s_and_b32 s47, s41, 3\ns_lshl_b32 s58, s47, 1")
    S("v_mul_u32_u24 v242, 7168, v241")
    S("v_add_u32 v243, s58, v240")
    S(f"v_lshl_add_u32 v{V_X}, v243, 4, v242")
    S("v_add_u32 v243, 8, v243")
    S("v_subrev_u32 v244, 14, v243")
    S("v_cmp_le_u32 vcc, 14, v243")
    S("s_nop 1")
    S("v_cndmask_b32 v243, v243, v244, vcc")
    S(f"v_lshl_add_u32 v{V_Y}, v243, 4, v242")
    S("v_bfrev_b32 v244, 1")
    S("v_cmp_le_u32 vcc, 6, v240")
    S("s_nop 1")
    S(f"v_cndmask_b32 v{V_Y}, v{V_Y}, v244, vcc")
    S(f"v_lshlrev_b32 v{V_TOK}, 4, v0")
    S(f"v_lshl_add_u32 v{V_TOK}, v13, 12, v{V_TOK}")
    S.raw("s_waitcnt lgkmcnt(0)")
    S(f"s_lshl_b32 s59, s42, 19\ns_add_u32 s59, s59, {WS_XN}")
    S(f"s_add_u32 s8, s60, s59\ns_addc_u32 s9, s61, 0\ns_mov_b32 s10, 0x80000\ns_mov_b32 s11, 0x20000")
    S("s_lshl_b32 s59, s41, 8")
    S("s_add_u32 s12, s62, s59\ns_addc_u32 s13, s63, 0\ns_sub_u32 s14, 0x800000, s59\ns_mov_b32 s15, 0x20000")
    S("s_mul_i32 s59, s41, 224")
    S(f"s_add_u32 s16, s64, s59\ns_addc_u32 s17, s65, 0\ns_sub_u32 s18, {1024*7168}, s59\ns_mov_b32 s19, 0x20000")
    S(f"s_add_u32 s20, s66, s59\ns_addc_u32 s21, s67, 0\ns_mov_b32 s22, s18\ns_mov_b32 s23, 0x20000")
    S("s_mov_b32 s43, 0\ns_mov_b32 s44, 0\ns_mov_b32 s45, 0")
    for L in range(2):
        for q in range(10): S(gemm_load_op(L, q))
    for q in range(LA): S(gemm_load_op(2, q))
    S("s_lshl_b32 s59, s41, 19")
    S("s_add_u32 s24, s68, s59\ns_addc_u32 s25, s69, 0\ns_mov_b32 s26, 0x80000\ns_mov_b32 s27, 0x20000")
    S("s_add_u32 s28, s70, s59\ns_addc_u32 s29, s71, 0\ns_mov_b32 s30, 0x80000\ns_mov_b32 s31, 0x20000")
    S("s_lshr_b32 s59, s40, 1\ns_lshl_b32 s55, s42, 1\ns_add_u32 s59, s59, s55")
    S(f"s_mul_i32 s55, s59, {112*8192}\ns_add_u32 s55, s55, {WS_H}")
    S(f"s_add_u32 s32, s60, s55\ns_addc_u32 s33, s61, 0\ns_mov_b32 s34, {112*8192}\ns_mov_b32 s35, 0x20000")
    S(f"s_lshl_b32 s55, s59, 20\ns_add_u32 s55, s55, {WS_O}\ns_lshl_b32 s59, s41, 15\ns_add_u32 s55, s55, s59")
    S(f"s_add_u32 s36, s60, s55\ns_addc_u32 s37, s61, 0\ns_mov_b32 s38, 0x8000\ns_mov_b32 s39, 0x20000")
    S("s_mul_i32 s59, s41, 7")
    for b in range(7):
        S(f"s_add_u32 s55, s47, {b}\ns_sub_u32 s72, s55, 7\ns_cmp_ge_u32 s55, 7\ns_cselect_b32 s55, s72, s55\ns_add_u32 s55, s55, s59")
        S(f"s_lshr_b32 s72, s55, 1\ns_lshl_b32 s72, s72, 13\ns_and_b32 s55, s55, 1\ns_lshl_b32 s55, s55, 3\ns_add_u32 s{48+b}, s72, s55")
    S("v_and_b32 v241, 1, v13")
    S(f"v_lshlrev_b32 v{V_H}, 4, v0")
    S(f"v_lshl_add_u32 v{V_H}, v241, 12, v{V_H}")
    S("v_lshrrev_b32 v242, 4, v0\nv_and_b32 v243, 15, v0")
    S("v_lshl_add_u32 v244, v13, 4, v242")
    S("v_lshlrev_b32 v244, 8, v244")
    S("v_xor_b32 v245, v243, v242")
    S("v_lshl_add_u32 v245, v245, 4, v244")
    for i in range(4):
        S(f"v_xor_b32 v{V_KV+i}, {64*i}, v245")
    S("v_lshlrev_b32 v245, 1, v242")
    S("v_xor_b32 v245, v243, v245")
    S(f"v_lshl_add_u32 v{V_KV+4}, v245, 4, v244")
    S(f"v_xor_b32 v{V_KV+5}, 128, v{V_KV+4}")
    S("v_bfe_u32 v243, v0, 2, 2\nv_and_b32 v244, 3, v0")
    S("v_lshrrev_b32 v245, 1, v243\nv_and_b32 v246, 1, v242\nv_lshl_add_u32 v245, v246, 1, v245")
    S("v_lshlrev_b32 v246, 10, v242\nv_lshl_add_u32 v246, v243, 7, v246")
    S("v_lshrrev_b32 v247, 1, v244\nv_xor_b32 v247, v247, v245\nv_lshl_add_u32 v247, v247, 5, v246")
    S("v_and_b32 v248, 1, v244\nv_lshl_add_u32 v252, v248, 4, v247")
    S("v_lshl_add_u32 v246, v244, 3, v246\nv_lshl_add_u32 v253, v245, 5, v246")
    for nbl in range(4):
        S(f"v_xor_b32 v{V_AD+nbl}, {32*nbl}, v253")
        S(f"v_add_u32 v{V_AD+4+nbl}, {2*SLOT}, v{V_AD+nbl}")
    S(f"v_mov_b32 v{V_AD+8}, v252\nv_xor_b32 v{V_AD+9}, 64, v252")
    S(f"v_add_u32 v{V_AD+10}, {2*SLOT}, v{V_AD+8}\nv_add_u32 v{V_AD+11}, {2*SLOT}, v{V_AD+9}")
    for i in range(128): S(f"v_accvgpr_write_b32 a{QACC+i}, 0")
    for i in range(224): S(f"v_mov_b32 v{GU0+i}, 0")
    S.wait(vm=10 + LA)
    S("s_barrier")
    stamp(S, 1)
    for nb in range(LA):
        for x in a_reads(0, nb): S(x)
    def bar(s):
        S.wait(vm=10); S("s_barrier")
    S.bar_hook = bar
    S("s_mov_b32 s47, 7")
    n0 = len(S.ins)
    S.raw(".p2align 6")
    S.raw(f"L_{name}_g:")
    gemm_stages(S, [0, 1, 2, 3])
    body1 = [x.text for x in S.ins[n0:]]
    st = S.state()
    S2 = Stream(); S2.set_state(st); S2.bar_hook = lambda s: (S2.wait(vm=10), S2("s_barrier"))
    S2.raw(".p2align 6"); S2.raw(f"L_{name}_g:")
    gemm_stages(S2, [4, 5, 6, 7])
    assert body1 == [x.text for x in S2.ins], "gemm loop body not steady"
    errs = check_hazards(S.ins[n0:] + S2.ins, "gloop"); assert not errs, "\n".join(errs[:10])
    S("s_sub_u32 s47, s47, 1\ns_cmp_lg_u32 s47, 0")
    S(f"s_cbranch_scc1 L_{name}_g")
    tail = []
    for T in range(3):
        for i in range(4):
            tail.append(kv_dma("K", T, i, soff=f"s{73+T}"))
    S("s_mov_b32 s73, 0\ns_mov_b32 s74, 0x4000\ns_mov_b32 s75, 0x8000")
    def bar_tail(s):
        S.wait(vm={28: 10, 29: 10, 30: 10}[s]); S("s_barrier")
    S.bar_hook = bar_tail
    gemm_stages(S, [28, 29, 30, 31], tail_ops=tail)
    S("s_barrier")
    stamp(S, 2)
    S.raw(f"L_{name}_vpre:")
    for T in range(2):
        for i in range(4): S(kv_dma("V", T, i, soff=f"s{73+T}"))
    nst = 0
    S("s_mov_b32 s76, 0xc0135761")
    S("s_mov_b32 s77, 0xbdd2d3e8")
    S("v_mov_b32 v15, s76")
    T0 = 240
    for b in range(7):
        G = GU0 + 32 * b; U = G + 16
        for i in range(16): S(f"v_mul_f32 v{T0+i}, v{G+i}, v{G+i}")
        for i in range(16): S(f"v_fma_f32 v{T0+i}, v{T0+i}, s77, v15")
        for i in range(16): S(f"v_mul_f32 v{T0+i}, v{G+i}, v{T0+i}")
        for i in range(16): S(f"v_exp_f32 v{T0+i}, v{T0+i}")
        for i in range(16): S(f"v_mul_f32 v{U+i}, v{G+i}, v{U+i}")
        for i in range(16): S(f"v_add_f32 v{T0+i}, 1.0, v{T0+i}")
        for i in range(16): S(f"v_rcp_f32 v{T0+i}, v{T0+i}")
        for i in range(16): S(f"v_mul_f32 v{U+i}, v{U+i}, v{T0+i}")
        for i in range(8): S(f"v_cvt_pk_bf16_f32 v{G+i}, v{U+2*i}, v{U+2*i+1}")
        for mb in range(4):
            S(f"buffer_store_dwordx2 v[{G+2*mb}:{G+2*mb+1}], v{V_H}, s[32:35], s{48+b} offen offset:{1024*mb}")
            nst += 1
    qs = math.log2(math.e) / math.sqrt(128.0)
    import struct
    S(f"s_mov_b32 s76, {struct.unpack('<I', struct.pack('<f', qs))[0]:#x}")
    T0 = 240
    for nb in range(8):
        for i in range(16): S(f"v_accvgpr_read_b32 v{T0+i}, a{QACC+16*nb+i}")
        for i in range(16): S(f"v_mul_f32 v{T0+i}, s76, v{T0+i}")
        for i in range(8): S(f"v_cvt_pk_bf16_f32 v{T0+2*i}, v{T0+2*i}, v{T0+2*i+1}")
        for mb in range(4):
            for h in range(2):
                S(f"v_accvgpr_write_b32 a{A_Q + 16*mb + 4*(nb>>1) + 2*(nb&1) + h}, v{T0+4*mb+2*h}")
    S("s_mov_b32 s78, 0")
    S(f"s_load_dwordx2 s[62:63], s[0:1], {KA_WO}")
    S(f"s_load_dwordx2 s[64:65], s[0:1], {KA_WD}")
    S("v_and_b32 v240, 15, v0\nv_lshrrev_b32 v241, 4, v0")
    S("v_xor_b32 v242, v240, v241\nv_lshlrev_b32 v242, 4, v242\nv_lshl_add_u32 v242, v240, 8, v242")
    S(f"v_add_u32 v242, {KRING}, v242")
    for kk in range(4): S(f"v_xor_b32 v{A_KAD+kk}, {64*kk}, v242")
    S("v_lshrrev_b32 v242, 2, v0")
    S("v_and_b32 v243, 7, v242\nv_lshlrev_b32 v243, 5, v243\nv_lshl_add_u32 v243, v242, 8, v243")
    S("v_and_b32 v244, 3, v0\nv_lshl_add_u32 v243, v244, 3, v243")
    for db in range(8): S(f"v_xor_b32 v{A_VAD+db}, {32*db}, v243")
    for i in range(4): S(f"v_add_u32 v{V_KV+i}, 0x4000, v{V_KV+i}")
    S.raw(f"L_{name}_att:")
    S("s_mov_b32 s56, 0x8000")
    S("s_mov_b32 s79, 0x3f803f80")
    for i in range(4): S(f"v_mov_b32 v{A_ONE+i}, s79")
    for i in range(128): S(f"v_accvgpr_write_b32 a{A_O+i}, 0")
    for i in range(16): S(f"v_accvgpr_write_b32 a{A_L+i}, 0")
    stamp(S, 3)
    S.wait(vm=0)
    S("s_barrier")
    stamp(S, 4)
    for kb in range(2):
        for kk in range(4):
            d = A_K + 16 * kb + 4 * kk
            S(f"ds_read_b128 v[{d}:{d+3}], v{A_KAD+kk} offset:{kb*4096}")
    att_half(S, -1, do_pv=False, do_sm=False, v_reload=False, cfirst="0")
    S("s_nop 7")
    S("s_cmp_lg_u32 s78, 0")
    S(f"s_cbranch_scc1 L_{name}_havemax")
    sC = A_S
    for qb in range(4):
        m = A_NM + 4 * qb
        a = sC + 4 * qb; b = sC + 16 + 4 * qb
        S(f"v_max3_f32 v{m}, v{a}, v{a+1}, v{a+2}")
        S(f"v_max3_f32 v{m}, v{m}, v{a+3}, v{b}")
        S(f"v_max3_f32 v{m}, v{m}, v{b+1}, v{b+2}")
        S(f"v_max_f32 v{m}, v{m}, v{b+3}")
    crosslane_max(S, [A_NM + 4 * qb for qb in range(4)], A_TMP)
    for qb in range(4):
        m = A_NM + 4 * qb
        S(f"v_sub_f32 v{m}, 0, v{m}")
        for i in range(1, 4): S(f"v_mov_b32 v{m+i}, v{m}")
    S.raw(f"L_{name}_havemax:")
    for kb in range(2):
        for qb in range(4):
            for r in range(4):
                x = sC + 16 * kb + 4 * qb + r
                S(f"v_add_f32 v{x}, v{x}, v{A_NM+4*qb}")
    if PFW:
        S.raw("s_waitcnt lgkmcnt(0)"); S.lg = []
        S(f"s_mov_b32 s12, s62\ns_mov_b32 s13, s63\ns_mov_b32 s14, {4096*2048}")
        S(f"s_mov_b32 s16, s64\ns_mov_b32 s17, s65\ns_mov_b32 s18, {3584*2048}")
        S("s_lshl_b32 s79, s2, 2\ns_add_u32 s79, s79, s40")
        S("s_lshl_b32 s72, s79, 13\ns_mul_i32 s79, s79, 7168")
        S(f"v_lshlrev_b32 v{A_TMP}, 7, v0")
        S(f"buffer_load_dword v{A_TMP+1}, v{A_TMP}, s[12:15], s72 offen")
        S(f"buffer_load_dword v{A_TMP+2}, v{A_TMP}, s[16:19], s79 offen")
    att_stage(S, 0, "first")
    S("s_mov_b32 s47, 7")
    n0 = len(S.ins)
    S.raw(".p2align 6")
    S.raw(f"L_{name}_a:")
    for T in (1, 2, 3, 4): att_stage(S, T)
    body1 = [x.text for x in S.ins[n0:]]
    S2 = Stream(); S2.set_state(S.state())
    S2.raw(".p2align 6"); S2.raw(f"L_{name}_a:")
    for T in (5, 6, 7, 8): att_stage(S2, T)
    b2 = [x.text for x in S2.ins]
    if body1 != b2:
        for x, y in zip(body1, b2):
            if x != y: print("DIFF", x, "|", y); break
    assert body1 == b2, "att loop body not steady"
    errs = check_hazards(S.ins[n0:] + S2.ins, "aloop"); assert not errs, "\n".join(errs[:10])
    S("s_sub_u32 s47, s47, 1\ns_cmp_lg_u32 s47, 0")
    S(f"s_cbranch_scc1 L_{name}_a")
    att_stage(S, 29); att_stage(S, 30); att_stage(S, 31, "last")
    S("s_nop 7")
    stamp(S, 5)
    T0 = 16
    for qb in range(4): S(f"v_accvgpr_read_b32 v{A_TMP+qb}, a{A_L+4*qb}")
    S("s_cmp_lg_u32 s78, 0")
    S(f"s_cbranch_scc1 L_{name}_fin")
    S(f"v_add_f32 v{A_TMP+5}, v{A_TMP}, v{A_TMP+1}\nv_add_f32 v{A_TMP+6}, v{A_TMP+2}, v{A_TMP+3}\nv_add_f32 v{A_TMP+4}, v{A_TMP+5}, v{A_TMP+6}")
    S("s_mov_b32 s79, 0x4e800000")
    S(f"v_cmp_ngt_f32 vcc, s79, v{A_TMP+4}")
    S("s_nop 3")
    S("s_cmp_lg_u64 vcc, 0")
    S("s_cselect_b32 s79, 1, 0")
    S(f"v_mov_b32 v{A_TMP+5}, s79")
    S(f"v_mov_b32 v{A_TMP+6}, s40\nv_lshlrev_b32 v{A_TMP+6}, 2, v{A_TMP+6}")
    S(f"v_add_u32 v{A_TMP+6}, {64*1024}, v{A_TMP+6}")
    S(f"ds_write_b32 v{A_TMP+6}, v{A_TMP+5}")
    S(f"v_mov_b32 v{A_TMP+6}, {64*1024}")
    S.wait(lg=0)
    S("s_barrier")
    S(f"ds_read_b128 v[{A_TMP+8}:{A_TMP+11}], v{A_TMP+6}")
    S(f"v_or_b32 v{A_TMP+8}, v{A_TMP+8}, v{A_TMP+9}\nv_or_b32 v{A_TMP+10}, v{A_TMP+10}, v{A_TMP+11}\nv_or_b32 v{A_TMP+8}, v{A_TMP+8}, v{A_TMP+10}")
    S("s_nop 0")
    S(f"v_readfirstlane_b32 s79, v{A_TMP+8}")
    S("s_nop 1")
    S("s_cmp_lg_u32 s79, 0")
    S(f"s_cbranch_scc1 L_{name}_fb")
    S.raw(f"L_{name}_fin:")
    for qb in range(4): S(f"v_rcp_f32 v{A_TMP+qb}, v{A_TMP+qb}")
    for qb in range(4):
        B = T0 + 32 * qb
        for i in range(32): S(f"v_accvgpr_read_b32 v{B+i}, a{A_O+32*qb+i}")
        for i in range(32): S(f"v_mul_f32 v{B+i}, v{B+i}, v{A_TMP+qb}")
        D = 148 + 16 * qb
        for i in range(16): S(f"v_cvt_pk_bf16_f32 v{D+i}, v{B+2*i}, v{B+2*i+1}")
        for ks in range(4):
            S(f"s_mov_b32 s79, {8192*ks}")
            S(f"buffer_store_dwordx4 v[{D+4*ks}:{D+4*ks+3}], v{V_H}, s[36:39], s79 offen offset:{1024*qb}")
    stamp(S, 6)
    if STAMPS: S.wait(vm=0)
    stamp(S, 7)
    stamp_dump(S, 1, 8)
    S.raw(f"L_{name}_end:")
    S("s_endpgm")
    S.raw(f"L_{name}_fb:")
    S.lg = []; S.vm = []
    S("s_mov_b32 s78, 1")
    for qb in range(4): S(f"v_mov_b32 v{A_NM+4*qb}, 0xff800000")
    for i in range(4): S(f"v_subrev_u32 v{V_KV+i}, 0x4000, v{V_KV+i}")
    S("s_mov_b32 s56, 0")
    S("s_mov_b32 s47, 32")
    S.raw(f"L_{name}_fbl:")
    S("s_barrier")
    for i in range(4): S(kv_dma("K", 0, i))
    S("s_add_u32 s56, s56, 0x4000")
    S.wait(vm=0)
    S("s_barrier")
    for half in range(2):
        for kb in range(2):
            for kk in range(4):
                d = A_K + 16 * kb + 4 * kk
                S(f"ds_read_b128 v[{d}:{d+3}], v{A_KAD+kk} offset:{half*8192 + kb*4096}")
        att_half(S, -1, do_pv=False, do_sm=False, v_reload=False, k_reload=False, cfirst="0")
        S("s_nop 7")
        for qb in range(4):
            m = A_NM + 4 * qb
            a = sC + 4 * qb; b = sC + 16 + 4 * qb
            S(f"v_max3_f32 v{m}, v{m}, v{a}, v{a+1}")
            S(f"v_max3_f32 v{m}, v{m}, v{a+2}, v{a+3}")
            S(f"v_max3_f32 v{m}, v{m}, v{b}, v{b+1}")
            S(f"v_max3_f32 v{m}, v{m}, v{b+2}, v{b+3}")
    S("s_sub_u32 s47, s47, 1\ns_cmp_lg_u32 s47, 0")
    S(f"s_cbranch_scc1 L_{name}_fbl")
    crosslane_max(S, [A_NM + 4 * qb for qb in range(4)], A_TMP)
    for qb in range(4):
        m = A_NM + 4 * qb
        S(f"v_sub_f32 v{m}, 0, v{m}")
        for i in range(1, 4): S(f"v_mov_b32 v{m+i}, v{m}")
    S("s_barrier")
    for T in range(3):
        for i in range(4): S(kv_dma("K", T, i, soff=f"s{73+T}"))
    for T in range(2):
        for i in range(4): S(kv_dma("V", T, i, soff=f"s{73+T}"))
    for i in range(4): S(f"v_add_u32 v{V_KV+i}, 0x4000, v{V_KV+i}")
    S(f"s_branch L_{name}_att")
    errs = check_hazards(S.ins, name)
    assert not errs, "\n".join(errs[:20])
    return S.text(), kernel_desc(name, 512, 256, 102), f"; @launch kernel={name} grid=(256,1,1) block=(256,1,1) lds=163840"
```

```python
from asmlib import *
from layout import *
import math

import os
PFW = int(os.environ.get('K2_PFW', 1))
PFG = int(os.environ.get('K2_PFG', 0))
LA = 6
RA = 8
NG = 22
SLOT = 24576
KRING = 96 * 1024
VRING = 0

GU0 = 16
QACC = 0
BR = 128
AR = 192
V_TOK = 1; V_Q = 2; V_X = 3; V_Y = 4; V_H = 5
V_AD = 240
A_S = 16
A_P = 80
A_E = 112
A_NM = 128
A_ONE = 144
A_K = 148
A_V = 180
A_KAD = 212
A_VAD = 216
A_TMP = 224
V_KV = 6
V_O = 12
A_O = 0
A_Q = 128
A_L = 192

def acc(nb, mb):
    if nb < 8:
        r = QACC + 16 * nb + 4 * mb; return f"a[{r}:{r+3}]"
    k = nb - 8; b = k // 2; u = k % 2
    r = GU0 + 32 * b + 16 * u + 4 * mb; return f"v[{r}:{r+3}]"

def a_reads(stage, nb):
    slot = stage % 4
    st = 1 if slot >= 2 else 0
    base = (slot % 2) * SLOT
    ring = (NG * stage + nb) % RA
    d = AR + 4 * ring
    if nb < 8:
        half = nb >> 2; p64 = (nb >> 1) & 1; T = nb & 1
        ad = V_AD + 8 + 2 * st + p64
        off = base + half * 4096 + 8 * T
    else:
        k = nb - 8; b = k // 2; u = k % 2
        mh = 2 + 2 * u + (b >> 2)
        ad = V_AD + 4 * st + (b & 3)
        off = base + mh * 4096
    return [f"ds_read_b64_tr_b16 a[{d}:{d+1}], v{ad} offset:{off}",
            f"ds_read_b64_tr_b16 a[{d+2}:{d+3}], v{ad} offset:{off+512}"]

def gemm_load_op(L, q):
    slot = L % 4
    if q < 6:
        mat = q // 2; half = q % 2
        dst = slot * SLOT + q * 4096
        if mat == 0:
            t = f"s_add_u32 m0, s46, {dst - 128*half if dst - 128*half >= 0 else 0}\n"
            assert dst - 128 * half >= 0
            t += "s_nop 0\n"
            t += f"buffer_load_dwordx4 v{V_Q}, s[12:15], s44 offen offset:{128*half} lds"
            if half == 1: t += "\ns_add_u32 s44, s44, 0x40000"
        else:
            srd = "s[16:19]" if mat == 1 else "s[20:23]"
            t = f"s_add_u32 m0, s46, {dst}\ns_nop 0\n"
            t += f"buffer_load_dwordx4 v{V_X if half == 0 else V_Y}, {srd}, s45 offen lds"
            if q == 5: t += f"\ns_add_u32 s45, s45, {32*7168}"
        return t
    mb = q - 6
    d = BR + 16 * slot + 4 * mb
    t = f"buffer_load_dwordx4 a[{d}:{d+3}], v{V_TOK}, s[8:11], s43 offen offset:{1024*mb}"
    if mb == 3: t += "\ns_add_u32 s43, s43, 0x4000"
    return t

def kv_dma(which, slot, i, soff="s56"):
    t = ""
    if which == "K":
        if i == 0: t += f"s_add_u32 m0, s57, {KRING + slot*16384}\ns_nop 0\n"
        t += f"buffer_load_dwordx4 v{V_KV+i}, s[24:27], {soff} offen offset:{1024*i} lds"
    else:
        if i == 0: t += f"s_add_u32 m0, s57, {VRING + slot*16384}\ns_nop 0\n"
        t += f"buffer_load_dwordx4 v{V_KV+4+(i&1)}, s[28:31], {soff} offen offset:{1024*i} lds"
    return t

def gemm_stages(S, stages, last=31, tail_ops=None, first=False):
    tail_ops = list(tail_ops or [])
    for s in stages:
        for nb in range(NG):
            ring = (NG * s + nb) % RA
            a = AR + 4 * ring
            mf = []
            for mb in range(4):
                b = BR + 16 * (s % 4) + 4 * mb
                c = acc(nb, mb)
                mf.append(f"v_mfma_f32_16x16x32_bf16 {c}, a[{a}:{a+3}], a[{b}:{b+3}], {c}")
            fill = []
            ab = NG * s + nb + LA
            s2, nb2 = divmod(ab, NG)
            if s2 <= last:
                r = a_reads(s2, nb2)
                fill.append((0, r[0])); fill.append((1, r[1]))
            for sp in (s, s - 1):
                q = NG * s + nb - (NG * sp + NG - LA)
                if 0 <= q < 10:
                    if sp + 3 <= last:
                        fill.append((2, gemm_load_op(sp + 3, q)))
                    elif tail_ops:
                        fill.append((2, tail_ops.pop(0)))
            weave(S, mf, fill)
            if nb == NG - LA - 1 and s + 1 <= last:
                S.bar_hook(s)
    assert not tail_ops

def att_half(S, t, do_qk=True, do_pv=True, do_sm=True, k_reload=True, v_reload=True, dma=None, pre=None, cfirst=None):
    p = t & 1
    T = t >> 1
    sN = A_S + 32 * (p ^ 1); sC = A_S + 32 * p
    pW = A_P + 16 * p; pR = A_P + 16 * (p ^ 1)
    mf = []; lds = []
    kslot = ((t + 2) >> 1) % 4; khalf = (t + 2) & 1
    vslot = T % 4; vhalf = p
    def kread(kb, kk):
        d = A_K + 16 * kb + 4 * kk
        return f"ds_read_b128 v[{d}:{d+3}], v{A_KAD+kk} offset:{kslot*16384 + khalf*8192 + kb*4096}"
    def vread(db, n):
        d = A_V + 4 * db + 2 * n
        return f"ds_read_b64_tr_b16 v[{d}:{d+1}], v{A_VAD+db} offset:{vslot*16384 + vhalf*8192 + n*4096}"
    for kb in range(2):
        for kk in range(4):
            if do_qk:
                for qb in range(4):
                    d = sN + 16 * kb + 4 * qb
                    if kk == 0:
                        c = cfirst if cfirst is not None else f"v[{A_NM+4*qb}:{A_NM+4*qb+3}]"
                    else:
                        c = f"v[{d}:{d+3}]"
                    ka = A_K + 16 * kb + 4 * kk; qa = A_Q + 16 * qb + 4 * kk
                    mf.append(f"v_mfma_f32_16x16x32_bf16 v[{d}:{d+3}], v[{ka}:{ka+3}], a[{qa}:{qa+3}], {c}")
            if k_reload: lds.append((len(mf) - 1, kread(kb, kk)))
    for db in range(8):
        if do_pv:
            for qb in range(4):
                o = A_O + 32 * qb + 4 * db; va = A_V + 4 * db; pa = pR + 4 * qb
                mf.append(f"v_mfma_f32_16x16x32_bf16 a[{o}:{o+3}], v[{va}:{va+3}], v[{pa}:{pa+3}], a[{o}:{o+3}]")
            if db % 2 == 1:
                qb = db // 2
                l = A_L + 4 * qb; pa = pR + 4 * qb
                mf.append(f"v_mfma_f32_16x16x32_bf16 a[{l}:{l+3}], v[{A_ONE}:{A_ONE+3}], v[{pa}:{pa+3}], a[{l}:{l+3}]")
        if v_reload:
            e = len(mf) - 1 - (1 if (do_pv and db % 2 == 1) else 0)
            lds.append((e, vread(db, 0))); lds.append((e, vread(db, 1)))
    valu = []
    if do_sm:
        seq = []
        for qb in range(4):
            for kb in range(2):
                for r in range(4):
                    seq.append((qb, kb, r))
        pend = []
        for i, (qb, kb, r) in enumerate(seq):
            valu.append((8, f"v_exp_f32 v{A_E + i % 16}, v{sC + 16*kb + 4*qb + r}"))
            if pend and i >= pend[0][0] + 2:
                valu.append((4, pend.pop(0)[1]))
            if r % 2 == 1:
                pend.append((i, f"v_cvt_pk_bf16_f32 v{pW + 4*qb + 2*kb + r//2}, v{A_E + (i-1) % 16}, v{A_E + i % 16}"))
        for _, x in pend: valu.append((4, x))
    dm = list(dma or [])
    n = len(mf)
    if pre: S(pre)
    if n == 0:
        for _, x in lds: S(x)
        last_trans = False
        for c, x in valu:
            if last_trans and c == 4: S("s_nop 0")
            S(x); last_trans = (c == 8)
        for x in dm: S(x)
        return
    tot_v = sum(c for c, _ in valu)
    done_v = 0
    vi = 0; li = 0; di = 0
    dpos = [int((k + 0.5) * n / max(1, len(dm))) for k in range(len(dm))]
    for g in range(n):
        S(mf[g])
        cap = 8
        lastgap = (g == n - 1)
        prev_trans = False
        while True:
            want_v = vi < len(valu) and (done_v < tot_v * (g + 1) / n or lastgap)
            can_l = li < len(lds) and lds[li][0] <= g
            can_d = di < len(dm) and dpos[di] <= g
            if can_d and (cap >= 8 or lastgap):
                S(dm[di]); di += 1; cap -= 8; prev_trans = False
            elif want_v and (valu[vi][0] <= cap or lastgap) and not (can_l and lds[li][0] + 3 <= g and cap >= 4):
                if prev_trans and valu[vi][0] == 4: S("s_nop 0")
                prev_trans = valu[vi][0] == 8
                S(valu[vi][1]); done_v += valu[vi][0]; cap -= valu[vi][0]; vi += 1
            elif can_l and (cap >= 4 or lastgap):
                S(lds[li][1]); li += 1; cap -= 4; prev_trans = False
            else:
                break
    assert vi == len(valu) and li == len(lds) and di == len(dm)

def att_stage(S, T, kind="mid"):
    kd = [kv_dma("K", (T + 3) % 4, i) for i in range(4)]
    vd = [kv_dma("V", (T + 2) % 4, i) for i in range(4)]
    vd[3] += "\ns_add_u32 s56, s56, 0x4000"
    if kind == "first":
        att_half(S, 2 * T, do_pv=False, dma=kd)
        att_half(S, 2 * T + 1, dma=vd)
    elif kind == "last":
        S.wait(vm=0); S("s_barrier")
        att_half(S, 2 * T, k_reload=False)
        att_half(S, 2 * T + 1, do_qk=False, k_reload=False)
        att_half(S, 2 * T + 2, do_qk=False, do_sm=False, k_reload=False, v_reload=False)
    else:
        S.wait(vm=8); S("s_barrier")
        att_half(S, 2 * T, dma=kd)
        att_half(S, 2 * T + 1, dma=vd)

def crosslane_max(S, regs, tmp):
    for r in regs:
        S(f"v_mov_b32 v{tmp}, v{r}")
        S("s_nop 1")
        S(f"v_permlane16_swap_b32 v{tmp}, v{r}")
        S("s_nop 1")
        S(f"v_max_f32 v{r}, v{r}, v{tmp}")
        S(f"v_mov_b32 v{tmp}, v{r}")
        S("s_nop 1")
        S(f"v_permlane32_swap_b32 v{tmp}, v{r}")
        S("s_nop 1")
        S(f"v_max_f32 v{r}, v{r}, v{tmp}")

def gen_k2(name="main_kernel"):
    S = Stream()
    S.raw(kernel_head(name))
    S("s_cmp_ge_u32 s2, 256")
    S(f"s_cbranch_scc1 L_{name}_end")
    S(f"s_load_dwordx2 s[60:61], s[0:1], {KA_WS}")
    S(f"s_load_dwordx2 s[62:63], s[0:1], {KA_WQ}")
    S(f"s_load_dwordx4 s[64:67], s[0:1], {KA_WG}")
    S(f"s_load_dwordx4 s[68:71], s[0:1], {KA_K}")
    stamp(S, 0)
    S("v_lshrrev_b32 v13, 6, v0")
    S("v_and_b32 v0, 63, v0")
    S("v_readfirstlane_b32 s40, v13")
    S("s_and_b32 s41, s2, 7\ns_lshl_b32 s41, s41, 2\ns_bfe_u32 s42, s2, 0x20003\ns_add_u32 s41, s41, s42")
    S("s_lshr_b32 s42, s2, 5")
    S("s_lshl_b32 s46, s40, 10")
    S("s_lshl_b32 s57, s40, 12")
    S("v_lshrrev_b32 v14, 3, v0")
    S("v_and_b32 v15, 7, v0")
    S("v_bfe_u32 v240, v14, 1, 1")
    S("v_and_b32 v241, 1, v13")
    S("v_lshl_add_u32 v240, v241, 1, v240")
    S("v_lshlrev_b32 v240, 1, v240")
    S("v_xor_b32 v240, v240, v15")
    S("v_lshl_add_u32 v241, v13, 3, v14")
    S(f"v_lshlrev_b32 v{V_Q}, 13, v241")
    S(f"v_lshl_add_u32 v{V_Q}, v240, 4, v{V_Q}")
    S("s_and_b32 s47, s41, 3\ns_lshl_b32 s58, s47, 1")
    S("v_mul_u32_u24 v242, 7168, v241")
    S("v_add_u32 v243, s58, v240")
    S(f"v_lshl_add_u32 v{V_X}, v243, 4, v242")
    S("v_add_u32 v243, 8, v243")
    S("v_subrev_u32 v244, 14, v243")
    S("v_cmp_le_u32 vcc, 14, v243")
    S("s_nop 1")
    S("v_cndmask_b32 v243, v243, v244, vcc")
    S(f"v_lshl_add_u32 v{V_Y}, v243, 4, v242")
    S("v_bfrev_b32 v244, 1")
    S("v_cmp_le_u32 vcc, 6, v240")
    S("s_nop 1")
    S(f"v_cndmask_b32 v{V_Y}, v{V_Y}, v244, vcc")
    S(f"v_lshlrev_b32 v{V_TOK}, 4, v0")
    S(f"v_lshl_add_u32 v{V_TOK}, v13, 12, v{V_TOK}")
    S.raw("s_waitcnt lgkmcnt(0)")
    S(f"s_lshl_b32 s59, s42, 19\ns_add_u32 s59, s59, {WS_XN}")
    S(f"s_add_u32 s8, s60, s59\ns_addc_u32 s9, s61, 0\ns_mov_b32 s10, 0x80000\ns_mov_b32 s11, 0x20000")
    S("s_lshl_b32 s59, s41, 8")
    S("s_add_u32 s12, s62, s59\ns_addc_u32 s13, s63, 0\ns_sub_u32 s14, 0x800000, s59\ns_mov_b32 s15, 0x20000")
    S("s_mul_i32 s59, s41, 224")
    S(f"s_add_u32 s16, s64, s59\ns_addc_u32 s17, s65, 0\ns_sub_u32 s18, {1024*7168}, s59\ns_mov_b32 s19, 0x20000")
    S(f"s_add_u32 s20, s66, s59\ns_addc_u32 s21, s67, 0\ns_mov_b32 s22, s18\ns_mov_b32 s23, 0x20000")
    S("s_mov_b32 s43, 0\ns_mov_b32 s44, 0\ns_mov_b32 s45, 0")
    for L in range(2):
        for q in range(10): S(gemm_load_op(L, q))
    for q in range(LA): S(gemm_load_op(2, q))
    if PFG:
        S("s_lshl_b32 s59, s42, 2\ns_add_u32 s59, s59, s40\ns_lshl_b32 s59, s59, 5")
        S("s_lshl_b32 s55, s59, 13\ns_mul_i32 s59, s59, 7168")
        S("v_lshrrev_b32 v240, 1, v0\nv_and_b32 v241, 1, v0\nv_lshlrev_b32 v241, 7, v241")
        S("v_lshl_add_u32 v242, v240, 13, v241")
        S("v_mul_u32_u24 v243, 7168, v240\nv_add_u32 v244, 220, v243\nv_add_u32 v243, v243, v241")
        S.auto = False
        S("buffer_load_dword v254, v242, s[12:15], s55 offen")
        S("buffer_load_dword v254, v243, s[16:19], s59 offen")
        S("buffer_load_dword v254, v243, s[20:23], s59 offen")
        S("buffer_load_dword v254, v244, s[16:19], s59 offen")
        S("buffer_load_dword v254, v244, s[20:23], s59 offen")
        S.auto = True
    S("s_lshl_b32 s59, s41, 19")
    S("s_add_u32 s24, s68, s59\ns_addc_u32 s25, s69, 0\ns_mov_b32 s26, 0x80000\ns_mov_b32 s27, 0x20000")
    S("s_add_u32 s28, s70, s59\ns_addc_u32 s29, s71, 0\ns_mov_b32 s30, 0x80000\ns_mov_b32 s31, 0x20000")
    S("s_lshr_b32 s59, s40, 1\ns_lshl_b32 s55, s42, 1\ns_add_u32 s59, s59, s55")
    S(f"s_mul_i32 s55, s59, {112*8192}\ns_add_u32 s55, s55, {WS_H}")
    S(f"s_add_u32 s32, s60, s55\ns_addc_u32 s33, s61, 0\ns_mov_b32 s34, {112*8192}\ns_mov_b32 s35, 0x20000")
    S(f"s_lshl_b32 s55, s59, 20\ns_add_u32 s55, s55, {WS_O}\ns_lshl_b32 s59, s41, 15\ns_add_u32 s55, s55, s59")
    S(f"s_add_u32 s36, s60, s55\ns_addc_u32 s37, s61, 0\ns_mov_b32 s38, 0x8000\ns_mov_b32 s39, 0x20000")
    S("s_mul_i32 s59, s41, 7")
    for b in range(7):
        S(f"s_add_u32 s55, s47, {b}\ns_sub_u32 s72, s55, 7\ns_cmp_ge_u32 s55, 7\ns_cselect_b32 s55, s72, s55\ns_add_u32 s55, s55, s59")
        S(f"s_lshr_b32 s72, s55, 1\ns_lshl_b32 s72, s72, 13\ns_and_b32 s55, s55, 1\ns_lshl_b32 s55, s55, 3\ns_add_u32 s{48+b}, s72, s55")
    S("v_and_b32 v241, 1, v13")
    S(f"v_lshlrev_b32 v{V_H}, 4, v0")
    S(f"v_lshl_add_u32 v{V_H}, v241, 12, v{V_H}")
    S("v_lshrrev_b32 v242, 4, v0\nv_and_b32 v243, 15, v0")
    S("v_lshl_add_u32 v244, v13, 4, v242")
    S("v_lshlrev_b32 v244, 8, v244")
    S("v_xor_b32 v245, v243, v242")
    S("v_lshl_add_u32 v245, v245, 4, v244")
    for i in range(4):
        S(f"v_xor_b32 v{V_KV+i}, {64*i}, v245")
    S("v_lshlrev_b32 v245, 1, v242")
    S("v_xor_b32 v245, v243, v245")
    S(f"v_lshl_add_u32 v{V_KV+4}, v245, 4, v244")
    S(f"v_xor_b32 v{V_KV+5}, 128, v{V_KV+4}")
    S("v_bfe_u32 v243, v0, 2, 2\nv_and_b32 v244, 3, v0")
    S("v_lshrrev_b32 v245, 1, v243\nv_and_b32 v246, 1, v242\nv_lshl_add_u32 v245, v246, 1, v245")
    S("v_lshlrev_b32 v246, 10, v242\nv_lshl_add_u32 v246, v243, 7, v246")
    S("v_lshrrev_b32 v247, 1, v244\nv_xor_b32 v247, v247, v245\nv_lshl_add_u32 v247, v247, 5, v246")
    S("v_and_b32 v248, 1, v244\nv_lshl_add_u32 v252, v248, 4, v247")
    S("v_lshl_add_u32 v246, v244, 3, v246\nv_lshl_add_u32 v253, v245, 5, v246")
    for nbl in range(4):
        S(f"v_xor_b32 v{V_AD+nbl}, {32*nbl}, v253")
        S(f"v_add_u32 v{V_AD+4+nbl}, {2*SLOT}, v{V_AD+nbl}")
    S(f"v_mov_b32 v{V_AD+8}, v252\nv_xor_b32 v{V_AD+9}, 64, v252")
    S(f"v_add_u32 v{V_AD+10}, {2*SLOT}, v{V_AD+8}\nv_add_u32 v{V_AD+11}, {2*SLOT}, v{V_AD+9}")
    for i in range(128): S(f"v_accvgpr_write_b32 a{QACC+i}, 0")
    for i in range(224): S(f"v_mov_b32 v{GU0+i}, 0")
    S.wait(vm=10 + LA + (5 if PFG else 0))
    S("s_barrier")
    stamp(S, 1)
    for nb in range(LA):
        for x in a_reads(0, nb): S(x)
    def bar(s):
        S.wait(vm=10); S("s_barrier")
    S.bar_hook = bar
    S("s_mov_b32 s47, 7")
    n0 = len(S.ins)
    S.raw(".p2align 6")
    S.raw(f"L_{name}_g:")
    gemm_stages(S, [0, 1, 2, 3])
    body1 = [x.text for x in S.ins[n0:]]
    st = S.state()
    S2 = Stream(); S2.set_state(st); S2.bar_hook = lambda s: (S2.wait(vm=10), S2("s_barrier"))
    S2.raw(".p2align 6"); S2.raw(f"L_{name}_g:")
    gemm_stages(S2, [4, 5, 6, 7])
    assert body1 == [x.text for x in S2.ins], "gemm loop body not steady"
    errs = check_hazards(S.ins[n0:] + S2.ins, "gloop"); assert not errs, "\n".join(errs[:10])
    S("s_sub_u32 s47, s47, 1\ns_cmp_lg_u32 s47, 0")
    S(f"s_cbranch_scc1 L_{name}_g")
    tail = []
    for T in range(3):
        for i in range(4):
            tail.append(kv_dma("K", T, i, soff=f"s{73+T}"))
    S("s_mov_b32 s73, 0\ns_mov_b32 s74, 0x4000\ns_mov_b32 s75, 0x8000")
    def bar_tail(s):
        S.wait(vm={28: 10, 29: 10, 30: 10}[s]); S("s_barrier")
    S.bar_hook = bar_tail
    gemm_stages(S, [28, 29, 30, 31], tail_ops=tail)
    S("s_barrier")
    stamp(S, 2)
    S.raw(f"L_{name}_vpre:")
    for T in range(2):
        for i in range(4): S(kv_dma("V", T, i, soff=f"s{73+T}"))
    nst = 0
    S("s_mov_b32 s76, 0xc0135761")
    S("s_mov_b32 s77, 0xbdd2d3e8")
    S("v_mov_b32 v15, s76")
    T0 = 240
    for b in range(7):
        G = GU0 + 32 * b; U = G + 16
        for i in range(16): S(f"v_mul_f32 v{T0+i}, v{G+i}, v{G+i}")
        for i in range(16): S(f"v_fma_f32 v{T0+i}, v{T0+i}, s77, v15")
        for i in range(16): S(f"v_mul_f32 v{T0+i}, v{G+i}, v{T0+i}")
        for i in range(16): S(f"v_exp_f32 v{T0+i}, v{T0+i}")
        for i in range(16): S(f"v_mul_f32 v{U+i}, v{G+i}, v{U+i}")
        for i in range(16): S(f"v_add_f32 v{T0+i}, 1.0, v{T0+i}")
        for i in range(16): S(f"v_rcp_f32 v{T0+i}, v{T0+i}")
        for i in range(16): S(f"v_mul_f32 v{U+i}, v{U+i}, v{T0+i}")
        for i in range(8): S(f"v_cvt_pk_bf16_f32 v{G+i}, v{U+2*i}, v{U+2*i+1}")
        for mb in range(4):
            S(f"buffer_store_dwordx2 v[{G+2*mb}:{G+2*mb+1}], v{V_H}, s[32:35], s{48+b} offen offset:{1024*mb}")
            nst += 1
    qs = math.log2(math.e) / math.sqrt(128.0)
    import struct
    S(f"s_mov_b32 s76, {struct.unpack('<I', struct.pack('<f', qs))[0]:#x}")
    T0 = 240
    for nb in range(8):
        for i in range(16): S(f"v_accvgpr_read_b32 v{T0+i}, a{QACC+16*nb+i}")
        for i in range(16): S(f"v_mul_f32 v{T0+i}, s76, v{T0+i}")
        for i in range(8): S(f"v_cvt_pk_bf16_f32 v{T0+2*i}, v{T0+2*i}, v{T0+2*i+1}")
        for mb in range(4):
            for h in range(2):
                S(f"v_accvgpr_write_b32 a{A_Q + 16*mb + 4*(nb>>1) + 2*(nb&1) + h}, v{T0+4*mb+2*h}")
    S("s_mov_b32 s78, 0")
    S(f"s_load_dwordx2 s[62:63], s[0:1], {KA_WO}")
    S(f"s_load_dwordx2 s[64:65], s[0:1], {KA_WD}")
    S("v_and_b32 v240, 15, v0\nv_lshrrev_b32 v241, 4, v0")
    S("v_xor_b32 v242, v240, v241\nv_lshlrev_b32 v242, 4, v242\nv_lshl_add_u32 v242, v240, 8, v242")
    S(f"v_add_u32 v242, {KRING}, v242")
    for kk in range(4): S(f"v_xor_b32 v{A_KAD+kk}, {64*kk}, v242")
    S("v_lshrrev_b32 v242, 2, v0")
    S("v_and_b32 v243, 7, v242\nv_lshlrev_b32 v243, 5, v243\nv_lshl_add_u32 v243, v242, 8, v243")
    S("v_and_b32 v244, 3, v0\nv_lshl_add_u32 v243, v244, 3, v243")
    for db in range(8): S(f"v_xor_b32 v{A_VAD+db}, {32*db}, v243")
    for i in range(4): S(f"v_add_u32 v{V_KV+i}, 0x4000, v{V_KV+i}")
    S.raw(f"L_{name}_att:")
    S("s_mov_b32 s56, 0x8000")
    S("s_mov_b32 s79, 0x3f803f80")
    for i in range(4): S(f"v_mov_b32 v{A_ONE+i}, s79")
    for i in range(128): S(f"v_accvgpr_write_b32 a{A_O+i}, 0")
    for i in range(16): S(f"v_accvgpr_write_b32 a{A_L+i}, 0")
    stamp(S, 3)
    S.wait(vm=0)
    S("s_barrier")
    stamp(S, 4)
    for kb in range(2):
        for kk in range(4):
            d = A_K + 16 * kb + 4 * kk
            S(f"ds_read_b128 v[{d}:{d+3}], v{A_KAD+kk} offset:{kb*4096}")
    att_half(S, -1, do_pv=False, do_sm=False, v_reload=False, cfirst="0")
    S("s_nop 7")
    S("s_cmp_lg_u32 s78, 0")
    S(f"s_cbranch_scc1 L_{name}_havemax")
    sC = A_S
    for qb in range(4):
        m = A_NM + 4 * qb
        a = sC + 4 * qb; b = sC + 16 + 4 * qb
        S(f"v_max3_f32 v{m}, v{a}, v{a+1}, v{a+2}")
        S(f"v_max3_f32 v{m}, v{m}, v{a+3}, v{b}")
        S(f"v_max3_f32 v{m}, v{m}, v{b+1}, v{b+2}")
        S(f"v_max_f32 v{m}, v{m}, v{b+3}")
    crosslane_max(S, [A_NM + 4 * qb for qb in range(4)], A_TMP)
    for qb in range(4):
        m = A_NM + 4 * qb
        S(f"v_sub_f32 v{m}, 0, v{m}")
        for i in range(1, 4): S(f"v_mov_b32 v{m+i}, v{m}")
    S.raw(f"L_{name}_havemax:")
    for kb in range(2):
        for qb in range(4):
            for r in range(4):
                x = sC + 16 * kb + 4 * qb + r
                S(f"v_add_f32 v{x}, v{x}, v{A_NM+4*qb}")
    if PFW:
        S.raw("s_waitcnt lgkmcnt(0)"); S.lg = []
        S(f"s_mov_b32 s12, s62\ns_mov_b32 s13, s63\ns_mov_b32 s14, {4096*2048}")
        S(f"s_mov_b32 s16, s64\ns_mov_b32 s17, s65\ns_mov_b32 s18, {3584*2048}")
        S("s_lshl_b32 s79, s2, 2\ns_add_u32 s79, s79, s40")
        S("s_lshl_b32 s72, s79, 13\ns_mul_i32 s79, s79, 7168")
        S(f"v_lshlrev_b32 v{A_TMP}, 7, v0")
        S(f"buffer_load_dword v{A_TMP+1}, v{A_TMP}, s[12:15], s72 offen")
        S(f"buffer_load_dword v{A_TMP+2}, v{A_TMP}, s[16:19], s79 offen")
    att_stage(S, 0, "first")
    S("s_mov_b32 s47, 7")
    n0 = len(S.ins)
    S.raw(".p2align 6")
    S.raw(f"L_{name}_a:")
    for T in (1, 2, 3, 4): att_stage(S, T)
    body1 = [x.text for x in S.ins[n0:]]
    S2 = Stream(); S2.set_state(S.state())
    S2.raw(".p2align 6"); S2.raw(f"L_{name}_a:")
    for T in (5, 6, 7, 8): att_stage(S2, T)
    b2 = [x.text for x in S2.ins]
    if body1 != b2:
        for x, y in zip(body1, b2):
            if x != y: print("DIFF", x, "|", y); break
    assert body1 == b2, "att loop body not steady"
    errs = check_hazards(S.ins[n0:] + S2.ins, "aloop"); assert not errs, "\n".join(errs[:10])
    S("s_sub_u32 s47, s47, 1\ns_cmp_lg_u32 s47, 0")
    S(f"s_cbranch_scc1 L_{name}_a")
    att_stage(S, 29); att_stage(S, 30); att_stage(S, 31, "last")
    S("s_nop 7")
    stamp(S, 5)
    T0 = 16
    for qb in range(4): S(f"v_accvgpr_read_b32 v{A_TMP+qb}, a{A_L+4*qb}")
    S("s_cmp_lg_u32 s78, 0")
    S(f"s_cbranch_scc1 L_{name}_fin")
    S(f"v_add_f32 v{A_TMP+5}, v{A_TMP}, v{A_TMP+1}\nv_add_f32 v{A_TMP+6}, v{A_TMP+2}, v{A_TMP+3}\nv_add_f32 v{A_TMP+4}, v{A_TMP+5}, v{A_TMP+6}")
    S("s_mov_b32 s79, 0x4e800000")
    S(f"v_cmp_ngt_f32 vcc, s79, v{A_TMP+4}")
    S("s_nop 3")
    S("s_cmp_lg_u64 vcc, 0")
    S("s_cselect_b32 s79, 1, 0")
    S(f"v_mov_b32 v{A_TMP+5}, s79")
    S(f"v_mov_b32 v{A_TMP+6}, s40\nv_lshlrev_b32 v{A_TMP+6}, 2, v{A_TMP+6}")
    S(f"v_add_u32 v{A_TMP+6}, {64*1024}, v{A_TMP+6}")
    S(f"ds_write_b32 v{A_TMP+6}, v{A_TMP+5}")
    S(f"v_mov_b32 v{A_TMP+6}, {64*1024}")
    S.wait(lg=0)
    S("s_barrier")
    S(f"ds_read_b128 v[{A_TMP+8}:{A_TMP+11}], v{A_TMP+6}")
    S(f"v_or_b32 v{A_TMP+8}, v{A_TMP+8}, v{A_TMP+9}\nv_or_b32 v{A_TMP+10}, v{A_TMP+10}, v{A_TMP+11}\nv_or_b32 v{A_TMP+8}, v{A_TMP+8}, v{A_TMP+10}")
    S("s_nop 0")
    S(f"v_readfirstlane_b32 s79, v{A_TMP+8}")
    S("s_nop 1")
    S("s_cmp_lg_u32 s79, 0")
    S(f"s_cbranch_scc1 L_{name}_fb")
    S.raw(f"L_{name}_fin:")
    for qb in range(4): S(f"v_rcp_f32 v{A_TMP+qb}, v{A_TMP+qb}")
    for qb in range(4):
        B = T0 + 32 * qb
        for i in range(32): S(f"v_accvgpr_read_b32 v{B+i}, a{A_O+32*qb+i}")
        for i in range(32): S(f"v_mul_f32 v{B+i}, v{B+i}, v{A_TMP+qb}")
        D = 148 + 16 * qb
        for i in range(16): S(f"v_cvt_pk_bf16_f32 v{D+i}, v{B+2*i}, v{B+2*i+1}")
        for ks in range(4):
            S(f"s_mov_b32 s79, {8192*ks}")
            S(f"buffer_store_dwordx4 v[{D+4*ks}:{D+4*ks+3}], v{V_H}, s[36:39], s79 offen offset:{1024*qb}")
    stamp(S, 6)
    if STAMPS: S.wait(vm=0)
    stamp(S, 7)
    stamp_dump(S, 1, 8)
    S.raw(f"L_{name}_end:")
    S("s_endpgm")
    S.raw(f"L_{name}_fb:")
    S.lg = []; S.vm = []
    S("s_mov_b32 s78, 1")
    for qb in range(4): S(f"v_mov_b32 v{A_NM+4*qb}, 0xff800000")
    for i in range(4): S(f"v_subrev_u32 v{V_KV+i}, 0x4000, v{V_KV+i}")
    S("s_mov_b32 s56, 0")
    S("s_mov_b32 s47, 32")
    S.raw(f"L_{name}_fbl:")
    S("s_barrier")
    for i in range(4): S(kv_dma("K", 0, i))
    S("s_add_u32 s56, s56, 0x4000")
    S.wait(vm=0)
    S("s_barrier")
    for half in range(2):
        for kb in range(2):
            for kk in range(4):
                d = A_K + 16 * kb + 4 * kk
                S(f"ds_read_b128 v[{d}:{d+3}], v{A_KAD+kk} offset:{half*8192 + kb*4096}")
        att_half(S, -1, do_pv=False, do_sm=False, v_reload=False, k_reload=False, cfirst="0")
        S("s_nop 7")
        for qb in range(4):
            m = A_NM + 4 * qb
            a = sC + 4 * qb; b = sC + 16 + 4 * qb
            S(f"v_max3_f32 v{m}, v{m}, v{a}, v{a+1}")
            S(f"v_max3_f32 v{m}, v{m}, v{a+2}, v{a+3}")
            S(f"v_max3_f32 v{m}, v{m}, v{b}, v{b+1}")
            S(f"v_max3_f32 v{m}, v{m}, v{b+2}, v{b+3}")
    S("s_sub_u32 s47, s47, 1\ns_cmp_lg_u32 s47, 0")
    S(f"s_cbranch_scc1 L_{name}_fbl")
    crosslane_max(S, [A_NM + 4 * qb for qb in range(4)], A_TMP)
    for qb in range(4):
        m = A_NM + 4 * qb
        S(f"v_sub_f32 v{m}, 0, v{m}")
        for i in range(1, 4): S(f"v_mov_b32 v{m+i}, v{m}")
    S("s_barrier")
    for T in range(3):
        for i in range(4): S(kv_dma("K", T, i, soff=f"s{73+T}"))
    for T in range(2):
        for i in range(4): S(kv_dma("V", T, i, soff=f"s{73+T}"))
    for i in range(4): S(f"v_add_u32 v{V_KV+i}, 0x4000, v{V_KV+i}")
    S(f"s_branch L_{name}_att")
    errs = check_hazards(S.ins, name)
    assert not errs, "\n".join(errs[:20])
    return S.text(), kernel_desc(name, 512, 256, 102), f"; @launch kernel={name} grid=(256,1,1) block=(256,1,1) lds=163840"
```

```python
from asmlib import *
from layout import *

NS = 8; LA = 10; RA = 16; NG = 16; SLOT = 16384
ACC = 16
AR = 80
BR = 0
V_T0 = 1; V_T1 = 2; V_W0 = 3; V_W1 = 4; V_AD = 8
V_EX = 5; V_XO = 6

def a_reads(stage, gi):
    slot = stage % NS
    ks2, nb = divmod(gi, 8)
    st = slot // 4
    off = (slot % 4) * SLOT + (nb >> 2) * 8192 + ks2 * 4096
    d = AR + 4 * ((NG * stage + gi) % RA)
    ad = V_AD + 4 * st + (nb & 3)
    return [f"ds_read_b64_tr_b16 v[{d}:{d+1}], v{ad} offset:{off}",
            f"ds_read_b64_tr_b16 v[{d+2}:{d+3}], v{ad} offset:{off+2048}"]

def load_op(L, q):
    slot = L % NS
    if q < 4:
        hi = q >> 1; half = q & 1
        dst = slot * SLOT + half * 8192 + hi * 4096 - 128 * half
        t = f"s_add_u32 m0, s46, {dst}\ns_nop 0\n"
        t += f"buffer_load_dwordx4 v{V_W0+hi}, s[12:15], s44 offen offset:{128*half} lds"
        if q == 3: t += "\ns_add_u32 s44, s44, 0x20000"
        return t
    k = q - 4; ks2 = k >> 1; mb = k & 1
    d = BR + 16 * slot + 8 * ks2 + 4 * mb
    t = f"buffer_load_dwordx4 a[{d}:{d+3}], v{V_T0+ks2}, s[8:11], s43 offen offset:{1024*mb}"
    if k == 3: t += "\ns_add_u32 s43, s43, 0x4000"
    return t

def stages(S, lst):
    for s in lst:
        for gi in range(NG):
            ks2, nb = divmod(gi, 8)
            a = AR + 4 * ((NG * s + gi) % RA)
            mf = []
            for mb in range(2):
                b = BR + 16 * (s % NS) + 8 * ks2 + 4 * mb
                c = ACC + 8 * nb + 4 * mb
                mf.append(f"v_mfma_f32_16x16x32_bf16 v[{c}:{c+3}], v[{a}:{a+3}], a[{b}:{b+3}], v[{c}:{c+3}]")
            s2, g2 = divmod(NG * s + gi + LA, NG)
            r = a_reads(s2, g2)
            fill = [(0, r[0]), (0, r[1])]
            q = gi - (NG - LA)
            if 0 <= q < 8: fill.append((1, load_op(s + NS - 1, q)))
            weave(S, mf, fill)
            if gi == NG - LA - 1:
                S.wait(vm=8 * (NS - 3)); S("s_barrier")

def gen_k3(name="out_kernel"):
    S = Stream()
    S.raw(kernel_head(name))
    S("s_cmp_ge_u32 s2, 256")
    S(f"s_cbranch_scc1 L_{name}_end")
    S(f"s_load_dwordx2 s[60:61], s[0:1], {KA_WS}")
    S(f"s_load_dwordx2 s[62:63], s[0:1], {KA_WO}")
    S(f"s_load_dwordx2 s[64:65], s[0:1], {KA_WD}")
    S(f"s_load_dwordx2 s[66:67], s[0:1], {KA_X}")
    S(f"s_load_dwordx4 s[68:71], s[0:1], {KA_OUT}")
    S("v_lshrrev_b32 v7, 6, v0")
    S("v_and_b32 v0, 63, v0")
    S("v_readfirstlane_b32 s40, v7")
    stamp(S, 0)
    S("s_bfe_u32 s41, s2, 0x10002")
    S("s_and_b32 s42, s2, 1\ns_lshl_b32 s42, s42, 3\ns_bfe_u32 s47, s2, 0x30003\ns_add_u32 s42, s42, s47")
    S("s_bfe_u32 s45, s2, 0x10001\ns_lshl_b32 s45, s45, 2\ns_lshr_b32 s47, s2, 6\ns_add_u32 s45, s45, s47")
    S("s_lshl_b32 s46, s40, 10")
    S("v_lshrrev_b32 v16, 3, v0\nv_and_b32 v17, 7, v0")
    S("v_and_b32 v18, 6, v16\nv_xor_b32 v18, v18, v17")
    S("v_lshl_add_u32 v19, v7, 3, v16")
    S(f"v_lshlrev_b32 v{V_W0}, 11, v19\nv_lshl_add_u32 v{V_W0}, v18, 4, v{V_W0}")
    S(f"v_add_u32 v{V_W1}, 0x10000, v{V_W0}")
    S(f"v_lshlrev_b32 v{V_T0}, 4, v0\nv_lshl_add_u32 v{V_T0}, v7, 11, v{V_T0}")
    S(f"v_add_u32 v{V_T1}, 0x2000, v{V_T0}")
    S.raw("s_waitcnt lgkmcnt(0)")
    S(f"s_mov_b32 s48, {128*8192}\ns_mov_b32 s49, {WS_O}\ns_mov_b32 s14, {4096*2048}")
    S("s_cmp_lg_u32 s41, 0")
    S(f"s_cselect_b32 s48, {112*8192}, s48")
    S(f"s_cselect_b32 s49, {WS_H}, s49")
    S("s_cselect_b32 s12, s64, s62\ns_cselect_b32 s13, s65, s63")
    S(f"s_cselect_b32 s14, {3584*2048}, s14")
    S("s_cselect_b32 s47, 7, 8")
    S("s_mul_i32 s50, s42, s48\ns_add_u32 s50, s50, s49")
    S("s_add_u32 s8, s60, s50\ns_addc_u32 s9, s61, 0\ns_mov_b32 s10, s48\ns_mov_b32 s11, 0x20000")
    S("s_lshl_b32 s50, s45, 8")
    S("s_add_u32 s12, s12, s50\ns_addc_u32 s13, s13, 0\ns_sub_u32 s14, s14, s50\ns_mov_b32 s15, 0x20000")
    S("s_mov_b32 s43, 0\ns_mov_b32 s44, 0")
    for L in range(NS - 1):
        for q in range(8): S(load_op(L, q))
    S("v_bfe_u32 v16, v0, 2, 3\nv_lshrrev_b32 v17, 1, v16\nv_lshrrev_b32 v18, 5, v0\nv_and_b32 v19, 3, v0")
    S("v_lshlrev_b32 v20, 10, v18\nv_lshl_add_u32 v20, v16, 7, v20\nv_lshl_add_u32 v20, v17, 5, v20\nv_lshl_add_u32 v20, v19, 3, v20")
    for nbl in range(4):
        S(f"v_xor_b32 v{V_AD+nbl}, {32*nbl}, v20")
        S(f"v_add_u32 v{V_AD+4+nbl}, 0x10000, v{V_AD+nbl}")
    S(f"v_lshlrev_b32 v{V_EX}, 4, v0\nv_lshl_add_u32 v{V_EX}, v7, 13, v{V_EX}")
    S("v_and_b32 v16, 15, v0\nv_lshl_add_u32 v16, v7, 5, v16\nv_lshlrev_b32 v16, 11, v16")
    S("v_bfe_u32 v17, v0, 4, 1\nv_lshl_add_u32 v16, v17, 5, v16")
    S(f"v_lshrrev_b32 v17, 5, v0\nv_lshl_add_u32 v{V_XO}, v17, 4, v16")
    S("s_lshl_b32 s51, s42, 3\ns_add_u32 s51, s51, s45")
    S(f"s_lshl_b32 s52, s51, 15\ns_add_u32 s52, s52, {WS_EX}")
    S("s_lshl_b32 s53, s41, 22\ns_add_u32 s54, s52, s53")
    S("s_xor_b32 s53, s53, 0x400000\ns_add_u32 s55, s52, s53")
    S("s_add_u32 s16, s60, s54\ns_addc_u32 s17, s61, 0\ns_mov_b32 s18, 0x8000\ns_mov_b32 s19, 0x20000")
    S("s_add_u32 s20, s60, s55\ns_addc_u32 s21, s61, 0\ns_mov_b32 s22, 0x8000\ns_mov_b32 s23, 0x20000")
    S("s_lshl_b32 s52, s42, 18\ns_add_u32 s52, s52, s50")
    S("s_sub_u32 s53, 0x400000, s52")
    S("s_add_u32 s24, s66, s52\ns_addc_u32 s25, s67, 0\ns_mov_b32 s26, s53\ns_mov_b32 s27, 0x20000")
    S("s_add_u32 s28, s68, s52\ns_addc_u32 s29, s69, 0\ns_mov_b32 s30, s53\ns_mov_b32 s31, 0x20000")
    S(f"s_add_u32 s32, s60, {WS_FL}\ns_addc_u32 s33, s61, 0\ns_mov_b32 s34, 0x10000\ns_mov_b32 s35, 0x20000")
    S("s_lshl_b32 s56, s51, 2\ns_add_u32 s56, s56, s40")
    S("s_lshl_b32 s57, s56, 7\ns_mov_b32 s58, 0")
    for i in range(64): S(f"v_mov_b32 v{ACC+i}, 0")
    S.wait(vm=8 * (NS - 2))
    S("s_barrier")
    stamp(S, 1)
    for gi in range(LA):
        for x in a_reads(0, gi): S(x)
    n0 = len(S.ins)
    S.raw(".p2align 6"); S.raw(f"L_{name}_g:")
    stages(S, range(NS))
    body1 = [x.text for x in S.ins[n0:]]
    S2 = Stream(); S2.set_state(S.state())
    S2.raw(".p2align 6"); S2.raw(f"L_{name}_g:")
    stages(S2, range(NS, 2 * NS))
    assert body1 == [x.text for x in S2.ins], "k3 loop not steady"
    errs = check_hazards(S.ins[n0:] + S2.ins, "k3loop"); assert not errs, "\n".join(errs[:10])
    S("s_sub_u32 s47, s47, 1\ns_cmp_lg_u32 s47, 0")
    S(f"s_cbranch_scc1 L_{name}_g")
    S.wait(vm=0, lg=0)
    stamp(S, 2)
    S("v_mov_b32 v144, 0")
    S("buffer_load_dword v145, v144, s[32:35], s57 offen sc0 sc1")
    S("s_mov_b32 s59, 0xffff0000")
    S("s_cmp_eq_u32 s41, 0")
    S(f"s_cbranch_scc1 L_{name}_pack")
    T = 80
    for i in range(32): S(f"v_cvt_pk_bf16_f32 v{T+i}, v{ACC+2*i}, v{ACC+2*i+1}")
    for i in range(32):
        S(f"v_lshlrev_b32 v{ACC+2*i}, 16, v{T+i}")
        S(f"v_and_b32 v{ACC+2*i+1}, s59, v{T+i}")
    for i in range(64): S(f"v_mul_f32 v{T+i}, 0xbfb8aa3b, v{ACC+i}")
    for i in range(64): S(f"v_exp_f32 v{T+i}, v{T+i}")
    for i in range(64): S(f"v_add_f32 v{T+i}, 1.0, v{T+i}")
    for i in range(64): S(f"v_rcp_f32 v{T+i}, v{T+i}")
    for i in range(64): S(f"v_mul_f32 v{ACC+i}, v{ACC+i}, v{T+i}")
    S.raw(f"L_{name}_pack:")
    M = 80
    for i in range(32): S(f"v_cvt_pk_bf16_f32 v{M+i}, v{ACC+2*i}, v{ACC+2*i+1}")
    S.wait(vm=0)
    S("v_readfirstlane_b32 s36, v145")
    S("s_nop 1")
    S("s_lshr_b32 s36, s36, s58\ns_and_b32 s36, s36, 3\ns_cmp_lg_u32 s36, 0")
    S(f"s_cbranch_scc1 L_{name}_final")
    for i in range(8):
        S(f"s_mov_b32 s36, {4096*(i//4)}")
        S(f"buffer_store_dwordx4 v[{M+4*i}:{M+4*i+3}], v{V_EX}, s[16:19], s36 offen offset:{1024*(i%4)} sc0 sc1")
    S("s_lshl_b32 s36, 1, s58")
    S("v_mov_b32 v145, s36")
    S.wait(vm=0)
    S("s_mov_b64 s[38:39], exec\ns_mov_b64 exec, 1")
    S("buffer_atomic_add v145, v144, s[32:35], s57 offen sc0 sc1")
    S.wait(vm=0)
    S("s_mov_b64 exec, s[38:39]")
    S("v_readfirstlane_b32 s36, v145")
    S("s_nop 1")
    S("s_lshr_b32 s36, s36, s58\ns_and_b32 s36, s36, 3\ns_cmp_eq_u32 s36, 0")
    S(f"s_cbranch_scc1 L_{name}_end2")
    S.raw(f"L_{name}_final:")
    Pn = 112; X = 144
    for i in range(8):
        S(f"s_mov_b32 s36, {4096*(i//4)}")
        S(f"buffer_load_dwordx4 v[{Pn+4*i}:{Pn+4*i+3}], v{V_EX}, s[20:23], s36 offen offset:{1024*(i%4)} sc0 sc1")
    S("s_mov_b32 s37, 0x8000")
    for pr in range(4):
        for mb in range(2):
            d = X + 8 * pr + 4 * mb
            S(f"buffer_load_dwordx4 v[{d}:{d+3}], v{V_XO}, s[24:27], {'s37' if mb else '0'} offen offset:{64*pr}")
    A = 16; B = 176
    for i in range(32):
        S(f"v_lshlrev_b32 v{A+2*i}, 16, v{M+i}")
        S(f"v_and_b32 v{A+2*i+1}, s59, v{M+i}")
    for i in range(32):
        S(f"v_lshlrev_b32 v{B+2*i}, 16, v{Pn+i}")
        S(f"v_and_b32 v{B+2*i+1}, s59, v{Pn+i}")
    for i in range(64): S(f"v_mul_f32 v{A+i}, v{A+i}, v{B+i}")
    for pr in range(4):
        for mb in range(2):
            for sub in range(2):
                for h in range(2):
                    src = A + 8 * (2 * pr + sub) + 4 * mb + 2 * h
                    S(f"v_cvt_pk_bf16_f32 v{M + 8*pr + 4*mb + 2*sub + h}, v{src}, v{src+1}")
    S("s_nop 1")
    for k in range(8):
        S(f"v_permlane16_swap_b32 v{M+4*k}, v{M+4*k+2}")
        S(f"v_permlane16_swap_b32 v{M+4*k+1}, v{M+4*k+3}")
    for i in range(32):
        S(f"v_lshlrev_b32 v{A+2*i}, 16, v{M+i}")
        S(f"v_and_b32 v{A+2*i+1}, s59, v{M+i}")
    for i in range(32):
        S(f"v_lshlrev_b32 v{B+2*i}, 16, v{X+i}")
        S(f"v_and_b32 v{B+2*i+1}, s59, v{X+i}")
    for i in range(64): S(f"v_add_f32 v{A+i}, v{A+i}, v{B+i}")
    for i in range(32): S(f"v_cvt_pk_bf16_f32 v{M+i}, v{A+2*i}, v{A+2*i+1}")
    for pr in range(4):
        for mb in range(2):
            d = M + 8 * pr + 4 * mb
            S(f"buffer_store_dwordx4 v[{d}:{d+3}], v{V_XO}, s[28:31], {'s37' if mb else '0'} offen offset:{64*pr}")
    S.raw(f"L_{name}_end2:")
    if STAMPS: S.wait(vm=0)
    stamp(S, 4)
    stamp_dump(S, 2, 5)
    S.raw(f"L_{name}_end:")
    S("s_endpgm")
    errs = check_hazards(S.ins, name)
    assert not errs, "\n".join(errs[:20])
    return S.text(), kernel_desc(name, 384, 256, 102), f"; @launch kernel={name} grid=(256,1,1) block=(256,1,1) lds={NS*SLOT}"
```

```python
import sys
from k1_ln import gen_k1
from k2_main import gen_k2
import os
if os.environ.get('K3_OLD'):
    from k3_out import gen_k3
else:
    from k3v2 import gen_k3
ks = [gen_k1(), gen_k2(), gen_k3()]
out = ["; generated by gen/gen.py: LN -> (QGU GEMM + attention) -> (out/down GEMMs + combine)"]
out += [k[2] for k in ks]
out.append('.amdgcn_target "amdgcn-amd-amdhsa--gfx950"\n.text')
out += [k[0] for k in ks]
out.append('.section .rodata,"a"')
out += [k[1] for k in ks]
path = sys.argv[1] if len(sys.argv) > 1 else "recurrent_scan__mha_block_cached__geglu_ffn__prompt.s"
open(path, "w").write("\n".join(out) + "\n")
print("wrote", path)
```
